```python
import torch

def _softmax(x, axis=-1):
    return torch.softmax(x, dim=axis)
def _gelu(x):
    return torch.nn.functional.gelu(x, approximate="tanh")
def _silu(x):
    return torch.nn.functional.silu(x)
def _sigmoid(x):
    return torch.sigmoid(x)
def _layernorm(x, axis=-1, eps=1e-5):
    m = x.mean(dim=axis, keepdim=True)
    v = x.var(dim=axis, keepdim=True, unbiased=False)
    return (x - m) / torch.sqrt(v + eps)
def _scatter_add(tgt, idx, src, axis=0):
    return tgt.clone().index_add_(axis, idx, src)
def _segment_sum(src, seg, n):
    out = torch.zeros((n,) + src.shape[1:], dtype=src.dtype)
    return out.index_add_(0, seg, src)
def _pad(x, pw):
    flat = tuple(v for pair in reversed(pw) for v in pair)
    return torch.nn.functional.pad(x, flat)

kernel_name = 'standalone__paged_block_table_kv_pagedattention__decode'

def setup_inputs():

    _w = (lambda a: (lambda t: t.to(torch.bfloat16) if t.is_floating_point() else t)(torch.as_tensor(a)))
    B, Hq, Hkv, Sq, Skv, D = 1, 16, 8, 1, 65536, 256
    bs = 16
    nbps = max(1, Skv // bs)
    num_phys = B * nbps + 4
    bt = torch.randperm(num_phys)[: B * nbps].reshape(B, nbps).to(torch.int64)
    cl = (nbps * bs - (torch.arange(1, B + 1, dtype=torch.int64) * 2654435761) % max(1, nbps * bs // 2)).to(torch.int64)
    return {
        "q": _w((lambda *s: torch.randn(*s, dtype=torch.bfloat16) * 0.8)(B, Hq, Sq, D)),
        "k_cache": _w((lambda *s: torch.randn(*s, dtype=torch.bfloat16) * 0.8)(num_phys, bs, Hkv, D)),
        "v_cache": _w((lambda *s: torch.randn(*s, dtype=torch.bfloat16) * 0.05)(num_phys, bs, Hkv, D)),
        "block_table": _w(bt),
        "context_lens": _w(cl),
    }

def reference(q, k_cache, v_cache, block_table, context_lens):
    B, Hq, Sq, D = q.shape
    bs = k_cache.shape[1]
    Hkv = k_cache.shape[2]
    nbps = block_table.shape[1]
    Skv = nbps * bs
    bt = block_table.reshape(-1)
    k = (lambda x, *d: x.permute(*d))(k_cache[bt].reshape(B, Skv, Hkv, D), 0, 2, 1, 3)
    v = (lambda x, *d: x.permute(*d))(v_cache[bt].reshape(B, Skv, Hkv, D), 0, 2, 1, 3)
    g = Hq // Hkv
    qg = q.reshape(B, Hkv, g, Sq, D)
    scores = torch.einsum("bhgqd,bhkd->bhgqk", qg, k) * (D ** -0.5)
    pos = torch.arange(Skv)
    msk = pos[None, :] < context_lens[:, None]
    scores = torch.where(msk[:, None, None, None, :], scores, -1e9)
    p = _softmax(scores, axis=-1)
    out = torch.einsum("bhgqk,bhkd->bhgqd", p, v)
    return out.reshape(B, Hq, Sq, D)
```

```python
import sys
import argparse

NAME = "standalone__paged_block_table_kv_pagedattention__decode"

HEADER = """; Kernarg layout for this problem (64 bytes, ptrs only, base s[0:1]):
"""

KV_BYTES = 4100 * 65536
WS_SLOT = 2176
C_SCALE = 0x3DB8AA3B
NEG_BIG = 0xFF61B1E6
MASKED_RAW = 0xD06E6B28


class A:
    def __init__(self):
        self.l = []

    def __call__(self, s):
        for line in s.strip("\n").split("\n"):
            self.l.append(line if line.rstrip().endswith(":") else "    " + line.strip())

    def c(self, s):
        self.l.append("    ; " + s)

    def text(self):
        return "\n".join(self.l) + "\n"


def vr(b, n=4):
    return f"v[{b}:{b + n - 1}]"


def gen(o):
    NW = o.nw
    NBUF = o.nbuf
    pol = (" " + o.pol) if o.pol else ""
    STRIDE = 32 * NW
    a = A()
    V_LANE = 1
    V_OFFK = 2
    V_OFFV = 3
    V_BT = 7
    V_MASK = 8
    V_M = 12
    V_L = 13
    V_S = 16
    V_T = 20
    V_TOK = 14
    V_ALPHA = 15
    V_O = 24
    V_A = 32
    V_Q = 48
    V_BUF = 80
    nvgpr = V_BUF + 64 * NBUF
    S_K, S_V, S_Q, S_WS, S_OUT, S_DBG, S_BT = 20, 24, 28, 32, 36, 40, 44
    S_CL, S_NP, S_NK, S_IT, S_REM, S_OFF, S_W, S_H, S_J, S_C, S_FIN, S_TMP, S_P0 = range(48, 61)
    S_LN = 61

    def srd(base, ptr, nbytes):
        a(f"""
        s_mov_b32 s{base}, s{ptr}
        s_and_b32 s{base+1}, s{ptr+1}, 0xffff
        s_mov_b32 s{base+2}, {nbytes:#x}
        s_mov_b32 s{base+3}, 0x20000
        """)

    def stamp(i):
        if not o.stamps:
            return
        a(f"s_memrealtime s[{64+2*i}:{65+2*i}]")

    a(f"{NAME}_kernel:")
    a(f"""
    s_cmp_ge_u32 s2, 256
    s_cbranch_scc1 L_end
    s_load_dwordx16 s[4:19], s[0:1], 0
    """)
    stamp(0)
    a(f"""
    v_lshrrev_b32 v{V_T}, 6, v0
    v_and_b32 v{V_LANE}, 63, v0
    v_readfirstlane_b32 s{S_W}, v{V_T}
    s_lshr_b32 s{S_H}, s2, 5
    s_and_b32 s{S_J}, s2, 31
    s_mov_b32 s{S_C}, {C_SCALE:#x}
    s_mov_b32 s{S_FIN}, 0
    v_and_b32 v{V_T+1}, 15, v0            ; n = lane & 15
    v_bfe_u32 v{V_T+2}, v0, 4, 2          ; g = (lane >> 4) & 3
    s_lshl_b32 s{S_P0}, s{S_W}, 5
    s_add_u32 s{S_P0}, s{S_P0}, s{S_J}
    s_lshl_b32 s{S_TMP}, s{S_H}, 9        ; h * 512
    v_mul_u32_u24 v{V_BT}, {STRIDE}, v{V_LANE}
    v_add_u32 v{V_BT}, s{S_P0}, v{V_BT}
    v_lshlrev_b32 v{V_T+3}, 2, v{V_BT}
    ; K: lane (g,m): m*4096 + h*512 + g*16
    v_lshlrev_b32 v{V_OFFK}, 12, v{V_T+1}
    v_lshl_add_u32 v{V_OFFK}, v{V_T+2}, 4, v{V_OFFK}
    v_add_u32 v{V_OFFK}, s{S_TMP}, v{V_OFFK}
    ; V: lane (g,n): (4g+u)*4096 + h*512 + n*16
    v_lshlrev_b32 v{V_OFFV}, 14, v{V_T+2}
    v_lshl_add_u32 v{V_OFFV}, v{V_T+1}, 4, v{V_OFFV}
    v_add_u32 v{V_OFFV}, s{S_TMP}, v{V_OFFV}
    v_add_u32 v{V_OFFV+1}, 0x1000, v{V_OFFV}
    v_add_u32 v{V_OFFV+2}, 0x2000, v{V_OFFV}
    v_add_u32 v{V_OFFV+3}, 0x3000, v{V_OFFV}
    ; Q: lane (g,n): (2h + (n&1))*512 + g*16
    v_and_b32 v{V_S}, 1, v0
    v_lshlrev_b32 v{V_S}, 9, v{V_S}
    v_lshl_add_u32 v{V_S}, v{V_T+2}, 4, v{V_S}
    s_lshl_b32 s{S_TMP}, s{S_H}, 10
    v_add_u32 v{V_S}, s{S_TMP}, v{V_S}
    v_lshlrev_b32 v{V_TOK}, 2, v{V_T+2}   ; 4g
    s_waitcnt lgkmcnt(0)
    s_load_dword s{S_CL}, s[12:13], 0
    """)
    srd(S_BT, 10, 16384)
    a(f"buffer_load_dword v{V_S+1}, v{V_T+3}, s[{S_BT}:{S_BT+3}], 0 offen")
    srd(S_Q, 4, 8192)
    for jj in range(8):
        a(f"buffer_load_dwordx4 {vr(V_Q+4*jj)}, v{V_S}, s[{S_Q}:{S_Q+3}], 0 offen offset:{jj*64}")
    srd(S_K, 6, KV_BYTES)
    srd(S_V, 8, KV_BYTES)
    srd(S_WS, 18, 256 * WS_SLOT + 65536 * 16)
    srd(S_OUT, 14, 8192)
    srd(S_DBG, 16, 256)
    a(f"""
    v_bfe_u32 v{V_S+2}, v0, 1, 1          ; i'&1
    v_lshlrev_b32 v{V_S+2}, 4, v{V_S+2}   ; 0 or 16
    v_mov_b32 v{V_S+3}, 0xffff
    v_lshlrev_b32 v{V_S+3}, v{V_S+2}, v{V_S+3}
    v_bfe_u32 v{V_S+2}, v0, 2, 2
    """)
    for j in range(4):
        a(f"""
        v_cmp_eq_u32 vcc, {j}, v{V_S+2}
        s_nop 1
        v_cndmask_b32 v{V_MASK+j}, 0, v{V_S+3}, vcc
        """)
    a(f"""
    v_mov_b32 v{V_M}, {NEG_BIG:#x}
    v_mov_b32 v{V_L}, 0
    """)
    for r in range(8):
        a(f"v_mov_b32 v{V_O+r}, 0")
    a(f"""
    s_waitcnt lgkmcnt(0)
    s_min_i32 s{S_TMP}, s{S_CL}, 0x10000
    s_add_i32 s{S_NP}, s{S_TMP}, 15
    s_lshr_b32 s{S_NP}, s{S_NP}, 4
    s_cmp_lt_i32 s{S_CL}, 1
    s_cselect_b32 s{S_NP}, 0x1000, s{S_NP}
    s_cselect_b32 s{S_CL}, 0, s{S_TMP}
    s_sub_i32 s{S_NK}, s{S_NP}, s{S_P0}
    s_add_i32 s{S_NK}, s{S_NK}, {STRIDE-1}
    s_max_i32 s{S_NK}, s{S_NK}, 0
    s_lshr_b32 s{S_NK}, s{S_NK}, {STRIDE.bit_length()-1}
    s_lshl_b32 s{S_TMP}, s{S_P0}, 4
    s_sub_i32 s{S_REM}, s{S_CL}, s{S_TMP}
    v_cmp_gt_u32 vcc, s{S_NP}, v{V_BT}
    v_mov_b32 v{V_T}, {KV_BYTES:#x}
    s_waitcnt vmcnt(8)
    v_lshlrev_b32 v{V_S+1}, 16, v{V_S+1}
    v_cndmask_b32 v{V_BT}, v{V_T}, v{V_S+1}, vcc
    s_nop 0
    """)
    stamp(1)

    def kreg(b, jj):
        return V_BUF + 64 * b + 4 * jj

    def vreg(b, u, hf):
        return V_BUF + 64 * b + 32 + 8 * u + 4 * hf

    def load_k(b):
        for jj in range(8):
            a(f"buffer_load_dwordx4 {vr(kreg(b, jj))}, v{V_OFFK}, s[{S_K}:{S_K+3}], s{S_OFF} offen offset:{jj*64}{pol}")

    def load_v(b):
        for u in range(4):
            for hf in range(2):
                a(f"buffer_load_dwordx4 {vr(vreg(b, u, hf))}, v{V_OFFV+u}, s[{S_V}:{S_V+3}], s{S_OFF} offen offset:{hf*256}{pol}")

    for b in range(NBUF):
        a(f"""
        v_readlane_b32 s{S_OFF}, v{V_BT}, {b}
        s_nop 4
        """)
        load_k(b)
        load_v(b)
    a(f"""
    s_mov_b32 s{S_IT}, 0
    s_mov_b32 s{S_LN}, {NBUF}
    s_cmp_eq_u32 s{S_NK}, 0
    s_cbranch_scc1 L_done
    L_loop:
    """)
    WAITN = 16 * NBUF - 8
    for b in range(NBUF):
        a.c(f"---- unit on buffer {b} ----")
        a(f"""
        v_readlane_b32 s{S_OFF}, v{V_BT}, s{S_LN}
        s_waitcnt vmcnt({WAITN})
        """)
        if b == 0 and o.stamps:
            a(f"""
            s_cmp_lg_u32 s{S_IT}, 0
            s_cbranch_scc1 L_nostamp2
            """)
            stamp(2)
            a("L_nostamp2:")
        for jj in range(8):
            c = "0" if jj == 0 else vr(V_S)
            a(f"v_mfma_f32_16x16x32_bf16 {vr(V_S)}, {vr(kreg(b, jj))}, {vr(V_Q+4*jj)}, {c}")
        load_k(b)
        a(f"""
        s_cmp_ge_i32 s{S_REM}, 16
        s_cbranch_scc1 L_nomask{b}
        v_mov_b32 v{V_T}, {MASKED_RAW:#x}
        """)
        a(f"v_sub_u32 v{V_T+1}, s{S_REM}, v{V_TOK}")
        for r in range(4):
            a(f"""
            v_cmp_lt_i32 vcc, {r}, v{V_T+1}
            s_nop 1
            v_cndmask_b32 v{V_S+r}, v{V_T}, v{V_S+r}, vcc
            """)
        a(f"""
        L_nomask{b}:
        v_max3_f32 v{V_T}, v{V_S}, v{V_S+1}, v{V_S+2}
        v_max_f32 v{V_T}, v{V_T}, v{V_S+3}
        v_mov_b32 v{V_T+1}, v{V_T}
        s_nop 1
        v_permlane16_swap_b32 v{V_T}, v{V_T+1}
        v_max_f32 v{V_T}, v{V_T}, v{V_T+1}
        v_mov_b32 v{V_T+1}, v{V_T}
        s_nop 1
        v_permlane32_swap_b32 v{V_T}, v{V_T+1}
        v_max_f32 v{V_T}, v{V_T}, v{V_T+1}
        v_mul_f32 v{V_T}, s{S_C}, v{V_T}
        v_max_f32 v{V_T}, v{V_T}, v{V_M}
        v_sub_f32 v{V_ALPHA}, v{V_M}, v{V_T}
        v_mov_b32 v{V_M}, v{V_T}
        v_exp_f32 v{V_ALPHA}, v{V_ALPHA}
        """)
        for r in range(4):
            a(f"v_fma_f32 v{V_S+r}, v{V_S+r}, s{S_C}, -v{V_M}")
        for r in range(4):
            a(f"v_exp_f32 v{V_S+r}, v{V_S+r}")
        for r in range(8):
            qp = "[0,0,2,2]" if r % 2 == 0 else "[1,1,3,3]"
            a(f"v_mul_f32_dpp v{V_O+r}, v{V_ALPHA}, v{V_O+r} quad_perm:{qp} row_mask:0xf bank_mask:0xf")
        a(f"""
        v_add_f32 v{V_T}, v{V_S}, v{V_S+1}
        v_add_f32 v{V_T+1}, v{V_S+2}, v{V_S+3}
        v_add_f32 v{V_T}, v{V_T}, v{V_T+1}
        v_fma_f32 v{V_L}, v{V_L}, v{V_ALPHA}, v{V_T}
        """)
        for u in range(4):
            a(f"v_cvt_pk_bf16_f32 v{V_S+u}, v{V_S+u}, v{V_S+u}")
        for u in range(4):
            for j in range(4):
                a(f"v_and_b32 v{V_A+4*u+j}, v{V_S+u}, v{V_MASK+j}")
        a(f"""
        s_add_u32 s{S_IT}, s{S_IT}, 1
        s_add_u32 s{S_LN}, s{S_LN}, 1
        s_sub_i32 s{S_REM}, s{S_REM}, {16*STRIDE}
        s_waitcnt vmcnt({WAITN})
        """)
        for u in range(4):
            for hf in range(2):
                a(f"v_mfma_f32_16x16x32_bf16 {vr(V_O+4*hf)}, {vr(V_A+4*u)}, {vr(vreg(b, u, hf))}, {vr(V_O+4*hf)}")
        load_v(b)
        a(f"s_cmp_ge_u32 s{S_IT}, s{S_NK}")
        if b < NBUF - 1:
            a("s_cbranch_scc1 L_done")
        else:
            a("s_cbranch_scc0 L_loop")
    a("L_done:")
    stamp(3)
    a(f"""
    v_mov_b32 v{V_T}, v{V_L}
    s_nop 1
    v_permlane16_swap_b32 v{V_L}, v{V_T}
    v_add_f32 v{V_L}, v{V_L}, v{V_T}
    v_mov_b32 v{V_T}, v{V_L}
    s_nop 1
    v_permlane32_swap_b32 v{V_L}, v{V_T}
    v_add_f32 v{V_L}, v{V_L}, v{V_T}
    L_epi:
    """)
    ML_OFF = NW * 2048
    FLAG_OFF = ML_OFF + NW * 16
    lds_bytes = FLAG_OFF + 64
    a(f"""
    s_lshl_b32 s{S_TMP}, s{S_W}, 11
    v_lshlrev_b32 v{V_T}, 4, v{V_LANE}
    v_add_u32 v{V_T+1}, s{S_TMP}, v{V_T}
    s_lshl_b32 s{S_TMP}, s{S_W}, 4
    v_and_b32 v{V_T+2}, 1, v{V_LANE}
    v_lshlrev_b32 v{V_T+2}, 3, v{V_T+2}         ; q*8
    v_add_u32 v{V_T+3}, s{S_TMP}, v{V_T+2}
    ds_write_b128 v{V_T+1}, {vr(V_O)}
    ds_write_b128 v{V_T+1}, {vr(V_O+4)} offset:1024
    ds_write_b64 v{V_T+3}, v[{V_M}:{V_L}] offset:{ML_OFF}
    s_waitcnt lgkmcnt(0)
    s_barrier
    s_cmp_eq_u32 s{S_W}, 0
    s_cbranch_scc1 L_w0
    s_cmp_eq_u32 s{S_FIN}, 0
    s_cbranch_scc1 L_wait
    s_branch L_end
    L_w0:
    """)
    X = V_BUF
    Y = V_A

    def combine(n):
        a(f"v_max_f32 v{V_M}, v{Y}, v{Y+2}")
        for i in range(2, n):
            a(f"v_max_f32 v{V_M}, v{V_M}, v{Y+2*i}")
        for i in range(n):
            a(f"v_sub_f32 v{Y+2*i}, v{Y+2*i}, v{V_M}")
        for i in range(n):
            a(f"v_exp_f32 v{Y+2*i}, v{Y+2*i}")
        a("s_nop 1")
        a(f"v_mul_f32 v{V_L}, v{Y}, v{Y+1}")
        for i in range(1, n):
            a(f"v_fmac_f32 v{V_L}, v{Y+2*i}, v{Y+2*i+1}")

    def combine_o(n, waits=None):
        for i in range(n):
            if waits:
                a(waits(i))
            for r in range(8):
                qp = "[0,0,2,2]" if r % 2 == 0 else "[1,1,3,3]"
                op = "v_mul_f32_dpp" if i == 0 else "v_fmac_f32_dpp"
                a(f"{op} v{V_O+r}, v{Y+2*i}, v{X+8*i+r} quad_perm:{qp} row_mask:0xf bank_mask:0xf")

    a(f"s_waitcnt vmcnt(0)")
    for i in range(NW):
        a(f"ds_read_b64 v[{Y+2*i}:{Y+2*i+1}], v{V_T+2} offset:{ML_OFF+16*i}")
    for i in range(NW):
        a(f"ds_read_b128 {vr(X+8*i)}, v{V_T} offset:{2048*i}")
        a(f"ds_read_b128 {vr(X+8*i+4)}, v{V_T} offset:{2048*i+1024}")
    a("s_waitcnt lgkmcnt(15)" if 2 * NW > 15 else f"s_waitcnt lgkmcnt({2*NW})")
    if 2 * NW > 15:
        pass
    combine(NW)
    a("s_waitcnt lgkmcnt(0)")
    combine_o(NW)
    a(f"""
    s_cmp_lg_u32 s{S_FIN}, 0
    s_cbranch_scc1 L_out
    s_mul_i32 s{S_TMP}, s2, {WS_SLOT}
    buffer_store_dwordx4 {vr(V_O)}, v{V_T}, s[{S_WS}:{S_WS+3}], s{S_TMP} offen sc1
    buffer_store_dwordx4 {vr(V_O+4)}, v{V_T}, s[{S_WS}:{S_WS+3}], s{S_TMP} offen offset:1024 sc1
    s_mov_b64 exec, 3
    buffer_store_dwordx2 v[{V_M}:{V_L}], v{V_T+2}, s[{S_WS}:{S_WS+3}], s{S_TMP} offen offset:2048 sc1
    s_mov_b64 exec, 1
    v_mov_b32 v{V_S}, 1
    v_mov_b32 v{V_S+1}, 0
    s_lshl_b32 s{S_TMP}, s{S_H}, 5
    s_waitcnt vmcnt(0)
    """)
    stamp(4)
    a(f"""
    buffer_atomic_add v{V_S}, v{V_S+1}, s[{S_DBG}:{S_DBG+3}], s{S_TMP} offen sc0
    s_waitcnt vmcnt(0)
    ds_write_b32 v{V_S+1}, v{V_S} offset:{FLAG_OFF}
    s_mov_b64 exec, -1
    s_waitcnt lgkmcnt(0)
    L_wait:
    s_barrier
    v_mov_b32 v{V_S+1}, 0
    ds_read_b32 v{V_S}, v{V_S+1} offset:{FLAG_OFF}
    s_waitcnt vmcnt(0) lgkmcnt(0)
    v_readfirstlane_b32 s{S_TMP}, v{V_S}
    """)
    stamp(5)
    a(f"""
    s_cmp_lg_u32 s{S_TMP}, 31
    s_cbranch_scc1 L_end
    """)
    PW = 32 // NW
    a(f"""
    s_mov_b32 s{S_FIN}, 1
    s_lshl_b32 s{S_TMP}, s{S_H}, 5
    s_mul_i32 s{S_OFF}, s{S_W}, {PW}
    s_add_u32 s{S_TMP}, s{S_TMP}, s{S_OFF}
    s_mul_i32 s{S_TMP}, s{S_TMP}, {WS_SLOT}
    """)
    for i in range(PW):
        a(f"buffer_load_dwordx2 v[{Y+2*i}:{Y+2*i+1}], v{V_T+2}, s[{S_WS}:{S_WS+3}], s{S_TMP} offen offset:2048 sc1")
        a(f"buffer_load_dwordx4 {vr(X+8*i)}, v{V_T}, s[{S_WS}:{S_WS+3}], s{S_TMP} offen sc1")
        a(f"buffer_load_dwordx4 {vr(X+8*i+4)}, v{V_T}, s[{S_WS}:{S_WS+3}], s{S_TMP} offen offset:1024 sc1")
        if i < PW - 1:
            a(f"s_add_u32 s{S_TMP}, s{S_TMP}, {WS_SLOT}")
    a("s_waitcnt vmcnt(0)")
    stamp(6)
    combine(PW)
    combine_o(PW)
    a("s_branch L_epi")
    a("L_out:")
    a(f"""
    v_rcp_f32 v{V_ALPHA}, v{V_L}
    v_and_b32 v{V_T}, 15, v{V_LANE}
    v_lshlrev_b32 v{V_T}, 4, v{V_T}             ; n*16 bytes
    v_add_u32 v{V_T}, v{V_T}, v{V_TOK}
    v_fma_f32 v{V_T+1}, -v{V_L}, v{V_ALPHA}, 1.0
    v_fma_f32 v{V_ALPHA}, v{V_T+1}, v{V_ALPHA}, v{V_ALPHA}
    s_lshl_b32 s{S_TMP}, s{S_H}, 10
    s_nop 0
    """)
    for r in range(8):
        qp = "[0,0,2,2]" if r % 2 == 0 else "[1,1,3,3]"
        a(f"v_mul_f32_dpp v{V_O+r}, v{V_ALPHA}, v{V_O+r} quad_perm:{qp} row_mask:0xf bank_mask:0xf")
    for hf in range(2):
        for q in range(2):
            a(f"v_cvt_pk_bf16_f32 v{V_S+2*hf+q}, v{V_O+4*hf+q}, v{V_O+4*hf+q+2}")
    for hf in range(2):
        for q in range(2):
            a(f"buffer_store_dword v{V_S+2*hf+q}, v{V_T}, s[{S_OUT}:{S_OUT+3}], s{S_TMP} offen offset:{q*512+hf*256}")
    stamp(7)
    a("L_end:")
    if o.stamps:
        a(f"""
        s_cmp_ge_u32 s2, 256
        s_cbranch_scc1 L_end2
        s_waitcnt lgkmcnt(0)
        s_getreg_b32 s80, hwreg(HW_REG_XCC_ID)
        s_getreg_b32 s81, hwreg(HW_REG_HW_ID)
        s_mul_i32 s{S_TMP}, s2, {NW}
        s_add_u32 s{S_TMP}, s{S_TMP}, s{S_W}
        s_lshl_b32 s{S_TMP}, s{S_TMP}, 7
        s_add_u32 s{S_TMP}, s{S_TMP}, {256*WS_SLOT}
        s_mov_b64 exec, 1
        v_mov_b32 v{V_T}, 0
        """)
        for i in range(18):
            a(f"v_mov_b32 v{V_S}, s{64+i}")
            a(f"buffer_store_dword v{V_S}, v{V_T}, s[{S_WS}:{S_WS+3}], s{S_TMP} offen offset:{4*i}")
            a("s_nop 1")
        a("L_end2:")
    a("s_endpgm")

    lds = max(lds_bytes, o.lds)
    out = HEADER + f"; @launch grid=(256,1,1) block=({64*NW},1,1) lds={lds}\n"
    out += f""".amdgcn_target "amdgcn-amd-amdhsa--gfx950"
.text
.globl {NAME}_kernel
.p2align 8
.type {NAME}_kernel,@function
"""
    body = a.text()
    if o.stamps:
        init = "".join(f"    s_mov_b32 s{64+i}, 0\n" for i in range(18))
        body = body.replace(f"{NAME}_kernel:\n", f"{NAME}_kernel:\n" + init, 1)
    out += body
    acc = (nvgpr + 3) // 4 * 4
    out += f""".section .rodata,"a"
.p2align 6
.amdhsa_kernel {NAME}_kernel
  .amdhsa_next_free_vgpr {nvgpr}
  .amdhsa_next_free_sgpr 96
  .amdhsa_accum_offset {acc}
  .amdhsa_group_segment_fixed_size 0
  .amdhsa_kernarg_size 64
  .amdhsa_user_sgpr_count 2
  .amdhsa_user_sgpr_kernarg_segment_ptr 1
  .amdhsa_system_sgpr_workgroup_id_x 1
.end_amdhsa_kernel
"""
    return out


if __name__ == "__main__":
    p = argparse.ArgumentParser()
    p.add_argument("-o", default="cdna_kernels/" + NAME + ".s")
    p.add_argument("--nw", type=int, default=8)
    p.add_argument("--nbuf", type=int, default=2)
    p.add_argument("--pol", default="")
    p.add_argument("--lds", type=int, default=0)
    p.add_argument("--stamps", action="store_true")
    o = p.parse_args()
    open(o.o, "w").write(gen(o))
```

```python
import sys
import argparse

NAME = "standalone__paged_block_table_kv_pagedattention__decode"

HEADER = """; Kernarg layout for this problem (64 bytes, ptrs only, base s[0:1]):
"""

KV_BYTES = 4100 * 65536
WS_SLOT = 2176
C_SCALE = 0x3DB8AA3B
NEG_BIG = 0xFF61B1E6
MASKED_RAW = 0xD0800000


class A:
    def __init__(self):
        self.l = []

    def __call__(self, s):
        for line in s.strip("\n").split("\n"):
            self.l.append(line if line.rstrip().endswith(":") else "    " + line.strip())

    def c(self, s):
        self.l.append("    ; " + s)

    def text(self):
        return "\n".join(self.l) + "\n"


def vr(b, n=4):
    return f"v[{b}:{b + n - 1}]"


def gen(o):
    NW = o.nw
    NBUF = o.nbuf
    pol = (" " + o.pol) if o.pol else ""
    STRIDE = 32 * NW
    a = A()
    V_LANE = 1
    V_OFFK = 2
    V_OFFV = 3
    V_BT = 7
    V_MASK = 8
    V_M = 12
    V_L = 13
    V_S = 16
    V_T = 20
    V_TOK = 14
    V_ALPHA = 15
    V_O = 24
    V_A = 32
    V_Q = 48
    V_BUF = 80
    nvgpr = V_BUF + 64 * NBUF
    S_K, S_V, S_Q, S_WS, S_OUT, S_DBG, S_BT = 20, 24, 28, 32, 36, 40, 44
    S_CL, S_NP, S_NK, S_IT, S_REM, S_OFF, S_W, S_H, S_J, S_C, S_FIN, S_TMP, S_P0 = range(48, 61)
    S_LN = 61

    def srd(base, ptr, nbytes):
        a(f"""
        s_mov_b32 s{base}, s{ptr}
        s_and_b32 s{base+1}, s{ptr+1}, 0xffff
        s_mov_b32 s{base+2}, {nbytes:#x}
        s_mov_b32 s{base+3}, 0x20000
        """)

    def stamp(i):
        if not o.stamps:
            return
        a(f"s_memrealtime s[{64+2*i}:{65+2*i}]")

    HMAP = {
        0: f"s_lshr_b32 s{S_H}, s2, 5\ns_and_b32 s{S_J}, s2, 31",
        1: f"s_lshr_b32 s{S_H}, s2, 5\ns_xor_b32 s{S_H}, s{S_H}, 1\ns_and_b32 s{S_J}, s2, 31",
        2: f"s_and_b32 s{S_H}, s2, 7\ns_lshr_b32 s{S_J}, s2, 3",
        3: f"s_bfe_u32 s{S_H}, s2, 0x30003\ns_lshr_b32 s{S_J}, s2, 6\ns_lshl_b32 s{S_J}, s{S_J}, 3\ns_and_b32 s{S_TMP}, s2, 7\ns_or_b32 s{S_J}, s{S_J}, s{S_TMP}",
    }[o.hmap]
    a(f"{NAME}_kernel:")
    a(f"""
    s_cmp_ge_u32 s2, 256
    s_cbranch_scc1 L_end
    s_load_dwordx16 s[4:19], s[0:1], 0
    """)
    stamp(0)
    a(f"""
    v_lshrrev_b32 v{V_T}, 6, v0
    v_and_b32 v{V_LANE}, 63, v0
    v_readfirstlane_b32 s{S_W}, v{V_T}
    {HMAP}
    s_mov_b32 s{S_C}, {C_SCALE:#x}
    s_mov_b32 s{S_FIN}, 0
    v_and_b32 v{V_T+1}, 15, v0            ; n = lane & 15
    v_bfe_u32 v{V_T+2}, v0, 4, 2          ; g = (lane >> 4) & 3
    s_lshl_b32 s{S_P0}, s{S_W}, 5
    s_add_u32 s{S_P0}, s{S_P0}, s{S_J}
    s_lshl_b32 s{S_TMP}, s{S_H}, 9        ; h * 512
    v_mul_u32_u24 v{V_BT}, {STRIDE}, v{V_LANE}
    v_add_u32 v{V_BT}, s{S_P0}, v{V_BT}
    v_lshlrev_b32 v{V_T+3}, 2, v{V_BT}
    ; K: lane (g,m): m*4096 + h*512 + g*16
    v_lshlrev_b32 v{V_OFFK}, 12, v{V_T+1}
    v_lshl_add_u32 v{V_OFFK}, v{V_T+2}, 4, v{V_OFFK}
    v_add_u32 v{V_OFFK}, s{S_TMP}, v{V_OFFK}
    ; V: lane (g,n): (4g+u)*4096 + h*512 + n*16
    v_lshlrev_b32 v{V_OFFV}, 14, v{V_T+2}
    v_lshl_add_u32 v{V_OFFV}, v{V_T+1}, 4, v{V_OFFV}
    v_add_u32 v{V_OFFV}, s{S_TMP}, v{V_OFFV}
    v_add_u32 v{V_OFFV+1}, 0x1000, v{V_OFFV}
    v_add_u32 v{V_OFFV+2}, 0x2000, v{V_OFFV}
    v_add_u32 v{V_OFFV+3}, 0x3000, v{V_OFFV}
    ; Q: lane (g,n): (2h + (n&1))*512 + g*16
    v_and_b32 v{V_S}, 1, v0
    v_lshlrev_b32 v{V_S}, 9, v{V_S}
    v_lshl_add_u32 v{V_S}, v{V_T+2}, 4, v{V_S}
    s_lshl_b32 s{S_TMP}, s{S_H}, 10
    v_add_u32 v{V_S}, s{S_TMP}, v{V_S}
    v_lshlrev_b32 v{V_TOK}, 2, v{V_T+2}   ; 4g
    s_waitcnt lgkmcnt(0)
    s_load_dword s{S_CL}, s[12:13], 0
    """)
    srd(S_BT, 10, 16384)
    a(f"buffer_load_dword v{V_S+1}, v{V_T+3}, s[{S_BT}:{S_BT+3}], 0 offen")
    srd(S_Q, 4, 8192)
    for jj in range(8):
        a(f"buffer_load_dwordx4 {vr(V_Q+4*jj)}, v{V_S}, s[{S_Q}:{S_Q+3}], 0 offen offset:{jj*64}")
    srd(S_K, 6, KV_BYTES)
    srd(S_V, 8, KV_BYTES)
    srd(S_WS, 18, 256 * WS_SLOT + 65536 * 16)
    srd(S_OUT, 14, 8192)
    srd(S_DBG, 16, 256)
    a(f"""
    v_bfe_u32 v{V_S+2}, v0, 1, 1          ; i'&1
    v_lshlrev_b32 v{V_S+2}, 4, v{V_S+2}   ; 0 or 16
    v_mov_b32 v{V_S+3}, 0xffff
    v_lshlrev_b32 v{V_S+3}, v{V_S+2}, v{V_S+3}
    v_bfe_u32 v{V_S+2}, v0, 2, 2
    """)
    for j in range(4):
        a(f"""
        v_cmp_eq_u32 vcc, {j}, v{V_S+2}
        s_nop 1
        v_cndmask_b32 v{V_MASK+j}, 0, v{V_S+3}, vcc
        """)
    a(f"""
    v_mov_b32 v{V_M}, {NEG_BIG:#x}
    v_mov_b32 v{V_L}, 0
    """)
    for r in range(8):
        a(f"v_mov_b32 v{V_O+r}, 0")
    a(f"""
    s_waitcnt lgkmcnt(0)
    s_min_i32 s{S_TMP}, s{S_CL}, 0x10000
    s_add_i32 s{S_NP}, s{S_TMP}, 15
    s_lshr_b32 s{S_NP}, s{S_NP}, 4
    s_cmp_lt_i32 s{S_CL}, 1
    s_cselect_b32 s{S_NP}, 0x1000, s{S_NP}
    s_cselect_b32 s{S_CL}, 0, s{S_TMP}
    s_sub_i32 s{S_NK}, s{S_NP}, s{S_P0}
    s_add_i32 s{S_NK}, s{S_NK}, {STRIDE-1}
    s_max_i32 s{S_NK}, s{S_NK}, 0
    s_lshr_b32 s{S_NK}, s{S_NK}, {STRIDE.bit_length()-1}
    s_lshl_b32 s{S_TMP}, s{S_P0}, 4
    s_sub_i32 s{S_REM}, s{S_CL}, s{S_TMP}
    v_cmp_gt_u32 vcc, s{S_NP}, v{V_BT}
    v_mov_b32 v{V_T}, {KV_BYTES:#x}
    s_waitcnt vmcnt(8)
    v_lshlrev_b32 v{V_S+1}, 16, v{V_S+1}
    v_cndmask_b32 v{V_BT}, v{V_T}, v{V_S+1}, vcc
    s_nop 0
    """)
    stamp(1)

    def kreg(b, jj):
        return V_BUF + 64 * b + 4 * jj

    def vreg(b, u, hf):
        return V_BUF + 64 * b + 32 + 8 * u + 4 * hf

    def load_k(b):
        for jj in range(8):
            a(f"buffer_load_dwordx4 {vr(kreg(b, jj))}, v{V_OFFK}, s[{S_K}:{S_K+3}], s{S_OFF} offen offset:{jj*64}{pol}")

    def load_v(b):
        for u in range(4):
            for hf in range(2):
                a(f"buffer_load_dwordx4 {vr(vreg(b, u, hf))}, v{V_OFFV+u}, s[{S_V}:{S_V+3}], s{S_OFF} offen offset:{hf*256}{pol}")

    for b in range(NBUF):
        a(f"""
        v_readlane_b32 s{S_OFF}, v{V_BT}, {b}
        s_nop 4
        """)
        load_k(b)
        load_v(b)
    a(f"""
    s_mov_b32 s{S_IT}, 0
    s_mov_b32 s{S_LN}, {NBUF}
    s_cmp_eq_u32 s{S_NK}, 0
    s_cbranch_scc1 L_done
    L_loop:
    """)
    WAITN = 16 * NBUF - 8
    for b in range(NBUF):
        a.c(f"---- unit on buffer {b} ----")
        a(f"""
        v_readlane_b32 s{S_OFF}, v{V_BT}, s{S_LN}
        s_waitcnt vmcnt({WAITN})
        """)
        if b == 0 and o.stamps:
            a(f"""
            s_cmp_lg_u32 s{S_IT}, 0
            s_cbranch_scc1 L_nostamp2
            """)
            stamp(2)
            a("L_nostamp2:")
        for jj in range(8):
            c = "0" if jj == 0 else vr(V_S)
            a(f"v_mfma_f32_16x16x32_bf16 {vr(V_S)}, {vr(kreg(b, jj))}, {vr(V_Q+4*jj)}, {c}")
        load_k(b)
        a(f"""
        s_cmp_ge_i32 s{S_REM}, 16
        s_cbranch_scc1 L_nomask{b}
        v_mov_b32 v{V_T}, {MASKED_RAW:#x}
        """)
        a(f"v_sub_u32 v{V_T+1}, s{S_REM}, v{V_TOK}")
        for r in range(4):
            a(f"""
            v_cmp_lt_i32 vcc, {r}, v{V_T+1}
            s_nop 1
            v_cndmask_b32 v{V_S+r}, v{V_T}, v{V_S+r}, vcc
            """)
        a(f"""
        L_nomask{b}:
        v_max3_f32 v{V_T}, v{V_S}, v{V_S+1}, v{V_S+2}
        v_max_f32 v{V_T}, v{V_T}, v{V_S+3}
        v_mov_b32 v{V_T+1}, v{V_T}
        s_nop 1
        v_permlane16_swap_b32 v{V_T}, v{V_T+1}
        v_max_f32 v{V_T}, v{V_T}, v{V_T+1}
        v_mov_b32 v{V_T+1}, v{V_T}
        s_nop 1
        v_permlane32_swap_b32 v{V_T}, v{V_T+1}
        v_max_f32 v{V_T}, v{V_T}, v{V_T+1}
        v_mul_f32 v{V_T}, s{S_C}, v{V_T}
        v_max_f32 v{V_T}, v{V_T}, v{V_M}
        v_sub_f32 v{V_ALPHA}, v{V_M}, v{V_T}
        v_mov_b32 v{V_M}, v{V_T}
        v_exp_f32 v{V_ALPHA}, v{V_ALPHA}
        """)
        for r in range(4):
            a(f"v_fma_f32 v{V_S+r}, v{V_S+r}, s{S_C}, -v{V_M}")
        for r in range(4):
            a(f"v_exp_f32 v{V_S+r}, v{V_S+r}")
        for r in range(8):
            qp = "[0,0,2,2]" if r % 2 == 0 else "[1,1,3,3]"
            a(f"v_mul_f32_dpp v{V_O+r}, v{V_ALPHA}, v{V_O+r} quad_perm:{qp} row_mask:0xf bank_mask:0xf")
        a(f"""
        v_add_f32 v{V_T}, v{V_S}, v{V_S+1}
        v_add_f32 v{V_T+1}, v{V_S+2}, v{V_S+3}
        v_add_f32 v{V_T}, v{V_T}, v{V_T+1}
        v_fma_f32 v{V_L}, v{V_L}, v{V_ALPHA}, v{V_T}
        """)
        for u in range(4):
            a(f"v_cvt_pk_bf16_f32 v{V_S+u}, v{V_S+u}, v{V_S+u}")
        for u in range(4):
            for j in range(4):
                a(f"v_and_b32 v{V_A+4*u+j}, v{V_S+u}, v{V_MASK+j}")
        a(f"""
        s_add_u32 s{S_IT}, s{S_IT}, 1
        s_add_u32 s{S_LN}, s{S_LN}, 1
        s_sub_i32 s{S_REM}, s{S_REM}, {16*STRIDE}
        s_waitcnt vmcnt({WAITN})
        """)
        for u in range(4):
            for hf in range(2):
                a(f"v_mfma_f32_16x16x32_bf16 {vr(V_O+4*hf)}, {vr(V_A+4*u)}, {vr(vreg(b, u, hf))}, {vr(V_O+4*hf)}")
        load_v(b)
        a(f"s_cmp_ge_u32 s{S_IT}, s{S_NK}")
        if b < NBUF - 1:
            a("s_cbranch_scc1 L_done")
        else:
            a("s_cbranch_scc0 L_loop")
    a("L_done:")
    stamp(3)
    a(f"""
    v_mov_b32 v{V_T}, v{V_L}
    s_nop 1
    v_permlane16_swap_b32 v{V_L}, v{V_T}
    v_add_f32 v{V_L}, v{V_L}, v{V_T}
    v_mov_b32 v{V_T}, v{V_L}
    s_nop 1
    v_permlane32_swap_b32 v{V_L}, v{V_T}
    v_add_f32 v{V_L}, v{V_L}, v{V_T}
    L_epi:
    """)
    ML_OFF = NW * 2048
    FLAG_OFF = ML_OFF + NW * 16
    lds_bytes = FLAG_OFF + 64
    a(f"""
    s_lshl_b32 s{S_TMP}, s{S_W}, 11
    v_lshlrev_b32 v{V_T}, 4, v{V_LANE}
    v_add_u32 v{V_T+1}, s{S_TMP}, v{V_T}
    s_lshl_b32 s{S_TMP}, s{S_W}, 4
    v_and_b32 v{V_T+2}, 1, v{V_LANE}
    v_lshlrev_b32 v{V_T+2}, 3, v{V_T+2}         ; q*8
    v_add_u32 v{V_T+3}, s{S_TMP}, v{V_T+2}
    ds_write_b128 v{V_T+1}, {vr(V_O)}
    ds_write_b128 v{V_T+1}, {vr(V_O+4)} offset:1024
    ds_write_b64 v{V_T+3}, v[{V_M}:{V_L}] offset:{ML_OFF}
    s_waitcnt lgkmcnt(0)
    s_barrier
    s_cmp_eq_u32 s{S_W}, 0
    s_cbranch_scc1 L_w0
    s_cmp_eq_u32 s{S_FIN}, 0
    s_cbranch_scc1 L_wait
    s_branch L_end
    L_w0:
    """)
    X = V_BUF
    Y = V_A

    def combine(n):
        a(f"v_max_f32 v{V_M}, v{Y}, v{Y+2}")
        for i in range(2, n):
            a(f"v_max_f32 v{V_M}, v{V_M}, v{Y+2*i}")
        for i in range(n):
            a(f"v_sub_f32 v{Y+2*i}, v{Y+2*i}, v{V_M}")
        for i in range(n):
            a(f"v_exp_f32 v{Y+2*i}, v{Y+2*i}")
        a("s_nop 1")
        a(f"v_mul_f32 v{V_L}, v{Y}, v{Y+1}")
        for i in range(1, n):
            a(f"v_fmac_f32 v{V_L}, v{Y+2*i}, v{Y+2*i+1}")

    def combine_o(n, waits=None):
        for i in range(n):
            if waits:
                a(waits(i))
            for r in range(8):
                qp = "[0,0,2,2]" if r % 2 == 0 else "[1,1,3,3]"
                op = "v_mul_f32_dpp" if i == 0 else "v_fmac_f32_dpp"
                a(f"{op} v{V_O+r}, v{Y+2*i}, v{X+8*i+r} quad_perm:{qp} row_mask:0xf bank_mask:0xf")

    a(f"s_waitcnt vmcnt(0)")
    for i in range(NW):
        a(f"ds_read_b64 v[{Y+2*i}:{Y+2*i+1}], v{V_T+2} offset:{ML_OFF+16*i}")
    for i in range(NW):
        a(f"ds_read_b128 {vr(X+8*i)}, v{V_T} offset:{2048*i}")
        a(f"ds_read_b128 {vr(X+8*i+4)}, v{V_T} offset:{2048*i+1024}")
    a("s_waitcnt lgkmcnt(15)" if 2 * NW > 15 else f"s_waitcnt lgkmcnt({2*NW})")
    if 2 * NW > 15:
        pass
    combine(NW)
    a("s_waitcnt lgkmcnt(0)")
    combine_o(NW)
    a(f"""
    s_cmp_lg_u32 s{S_FIN}, 0
    s_cbranch_scc1 L_out
    s_lshl_b32 s{S_TMP}, s{S_H}, 5
    s_add_u32 s{S_TMP}, s{S_TMP}, s{S_J}
    s_mul_i32 s{S_TMP}, s{S_TMP}, {WS_SLOT}
    buffer_store_dwordx4 {vr(V_O)}, v{V_T}, s[{S_WS}:{S_WS+3}], s{S_TMP} offen sc1
    buffer_store_dwordx4 {vr(V_O+4)}, v{V_T}, s[{S_WS}:{S_WS+3}], s{S_TMP} offen offset:1024 sc1
    s_mov_b64 exec, 3
    buffer_store_dwordx2 v[{V_M}:{V_L}], v{V_T+2}, s[{S_WS}:{S_WS+3}], s{S_TMP} offen offset:2048 sc1
    s_mov_b64 exec, 1
    v_mov_b32 v{V_S}, 1
    v_mov_b32 v{V_S+1}, 0
    s_lshl_b32 s{S_TMP}, s{S_H}, 5
    s_waitcnt vmcnt(0)
    """)
    stamp(4)
    a(f"""
    buffer_atomic_add v{V_S}, v{V_S+1}, s[{S_DBG}:{S_DBG+3}], s{S_TMP} offen sc0
    s_waitcnt vmcnt(0)
    ds_write_b32 v{V_S+1}, v{V_S} offset:{FLAG_OFF}
    s_mov_b64 exec, -1
    s_waitcnt lgkmcnt(0)
    L_wait:
    s_barrier
    v_mov_b32 v{V_S+1}, 0
    ds_read_b32 v{V_S}, v{V_S+1} offset:{FLAG_OFF}
    s_waitcnt vmcnt(0) lgkmcnt(0)
    v_readfirstlane_b32 s{S_TMP}, v{V_S}
    """)
    stamp(5)
    a(f"""
    s_cmp_lg_u32 s{S_TMP}, 31
    s_cbranch_scc1 L_end
    """)
    PW = 32 // NW
    a(f"""
    s_mov_b32 s{S_FIN}, 1
    s_lshl_b32 s{S_TMP}, s{S_H}, 5
    s_mul_i32 s{S_OFF}, s{S_W}, {PW}
    s_add_u32 s{S_TMP}, s{S_TMP}, s{S_OFF}
    s_mul_i32 s{S_TMP}, s{S_TMP}, {WS_SLOT}
    """)
    for i in range(PW):
        a(f"buffer_load_dwordx2 v[{Y+2*i}:{Y+2*i+1}], v{V_T+2}, s[{S_WS}:{S_WS+3}], s{S_TMP} offen offset:2048 sc1")
        a(f"buffer_load_dwordx4 {vr(X+8*i)}, v{V_T}, s[{S_WS}:{S_WS+3}], s{S_TMP} offen sc1")
        a(f"buffer_load_dwordx4 {vr(X+8*i+4)}, v{V_T}, s[{S_WS}:{S_WS+3}], s{S_TMP} offen offset:1024 sc1")
        if i < PW - 1:
            a(f"s_add_u32 s{S_TMP}, s{S_TMP}, {WS_SLOT}")
    a("s_waitcnt vmcnt(0)")
    stamp(6)
    combine(PW)
    combine_o(PW)
    a("s_branch L_epi")
    a("L_out:")
    a(f"""
    v_rcp_f32 v{V_ALPHA}, v{V_L}
    v_and_b32 v{V_T}, 15, v{V_LANE}
    v_lshlrev_b32 v{V_T}, 4, v{V_T}             ; n*16 bytes
    v_add_u32 v{V_T}, v{V_T}, v{V_TOK}
    v_fma_f32 v{V_T+1}, -v{V_L}, v{V_ALPHA}, 1.0
    v_fma_f32 v{V_ALPHA}, v{V_T+1}, v{V_ALPHA}, v{V_ALPHA}
    s_lshl_b32 s{S_TMP}, s{S_H}, 10
    s_nop 0
    """)
    for r in range(8):
        qp = "[0,0,2,2]" if r % 2 == 0 else "[1,1,3,3]"
        a(f"v_mul_f32_dpp v{V_O+r}, v{V_ALPHA}, v{V_O+r} quad_perm:{qp} row_mask:0xf bank_mask:0xf")
    for hf in range(2):
        for q in range(2):
            a(f"v_cvt_pk_bf16_f32 v{V_S+2*hf+q}, v{V_O+4*hf+q}, v{V_O+4*hf+q+2}")
    for hf in range(2):
        for q in range(2):
            a(f"buffer_store_dword v{V_S+2*hf+q}, v{V_T}, s[{S_OUT}:{S_OUT+3}], s{S_TMP} offen offset:{q*512+hf*256}")
    stamp(7)
    a("L_end:")
    if o.stamps:
        a(f"""
        s_cmp_ge_u32 s2, 256
        s_cbranch_scc1 L_end2
        s_waitcnt lgkmcnt(0)
        s_getreg_b32 s80, hwreg(HW_REG_XCC_ID)
        s_getreg_b32 s81, hwreg(HW_REG_HW_ID)
        s_mul_i32 s{S_TMP}, s2, {NW}
        s_add_u32 s{S_TMP}, s{S_TMP}, s{S_W}
        s_lshl_b32 s{S_TMP}, s{S_TMP}, 7
        s_add_u32 s{S_TMP}, s{S_TMP}, {256*WS_SLOT}
        s_mov_b64 exec, 1
        v_mov_b32 v{V_T}, 0
        """)
        for i in range(18):
            a(f"v_mov_b32 v{V_S}, s{64+i}")
            a(f"buffer_store_dword v{V_S}, v{V_T}, s[{S_WS}:{S_WS+3}], s{S_TMP} offen offset:{4*i}")
            a("s_nop 1")
        a("L_end2:")
    a("s_endpgm")

    lds = max(lds_bytes, o.lds)
    out = HEADER + f"; @launch grid=(256,1,1) block=({64*NW},1,1) lds={lds}\n"
    out += f""".amdgcn_target "amdgcn-amd-amdhsa--gfx950"
.text
.globl {NAME}_kernel
.p2align 8
.type {NAME}_kernel,@function
"""
    body = a.text()
    if o.stamps:
        init = "".join(f"    s_mov_b32 s{64+i}, 0\n" for i in range(18))
        body = body.replace(f"{NAME}_kernel:\n", f"{NAME}_kernel:\n" + init, 1)
    out += body
    acc = (nvgpr + 3) // 4 * 4
    out += f""".section .rodata,"a"
.p2align 6
.amdhsa_kernel {NAME}_kernel
  .amdhsa_next_free_vgpr {nvgpr}
  .amdhsa_next_free_sgpr 96
  .amdhsa_accum_offset {acc}
  .amdhsa_group_segment_fixed_size 0
  .amdhsa_kernarg_size 64
  .amdhsa_user_sgpr_count 2
  .amdhsa_user_sgpr_kernarg_segment_ptr 1
  .amdhsa_system_sgpr_workgroup_id_x 1
.end_amdhsa_kernel
"""
    return out


if __name__ == "__main__":
    p = argparse.ArgumentParser()
    p.add_argument("-o", default="cdna_kernels/" + NAME + ".s")
    p.add_argument("--nw", type=int, default=8)
    p.add_argument("--nbuf", type=int, default=2)
    p.add_argument("--pol", default="")
    p.add_argument("--lds", type=int, default=0)
    p.add_argument("--stamps", action="store_true")
    p.add_argument("--hmap", type=int, default=0)
    o = p.parse_args()
    open(o.o, "w").write(gen(o))
```

```python
import argparse
from gen import A, vr, HEADER, NAME, KV_BYTES, C_SCALE, NEG_BIG, MASKED_RAW

WS_SLOT = 2176
KPAD = 1056
KT = 8 * KPAD
SLOT = KT + 8192


def gen(o):
    W, R = o.w, o.ring
    pol = (" " + o.pol) if o.pol else ""
    a = A()
    READY = R * SLOT
    CONS = READY + 256
    MERGE = CONS + 512
    LDS_BYTES = MERGE + 2048 + 512
    S_K, S_V, S_Q, S_WS, S_OUT, S_DBG, S_BT = 20, 24, 28, 32, 36, 40, 44
    (S_CL, S_NP, S_NK, S_U, S_REM, S_OFF, S_W, S_H, S_J, S_C, S_TMP, S_T2, S_SLOT, S_RDY, S_NEED,
     S_WSO) = range(48, 64)
    ST0 = 64

    def srd(base, ptr, nbytes):
        a(f"""
        s_mov_b32 s{base}, s{ptr}
        s_and_b32 s{base+1}, s{ptr+1}, 0xffff
        s_mov_b32 s{base+2}, {nbytes:#x}
        s_mov_b32 s{base+3}, 0x20000
        """)

    def stamp(i):
        if o.stamps:
            a(f"s_memrealtime s[{ST0+2*i}:{ST0+1+2*i}]")

    def calc_np_nk():
        a(f"""
        s_min_i32 s{S_TMP}, s{S_CL}, 0x10000
        s_add_i32 s{S_NP}, s{S_TMP}, 15
        s_lshr_b32 s{S_NP}, s{S_NP}, 4
        s_cmp_lt_i32 s{S_CL}, 1
        s_cselect_b32 s{S_NP}, 0x1000, s{S_NP}
        s_cselect_b32 s{S_CL}, 0, s{S_TMP}
        s_sub_i32 s{S_NK}, s{S_NP}, s{S_J}
        s_add_i32 s{S_NK}, s{S_NK}, 31
        s_lshr_b32 s{S_NK}, s{S_NK}, 5
        """)

    a(f"{NAME}_kernel:")
    if o.stamps:
        for i in range(18):
            a(f"s_mov_b32 s{ST0+i}, 0")
    a(f"""
    s_cmp_ge_u32 s2, 256
    s_cbranch_scc1 L_exit
    s_load_dwordx16 s[4:19], s[0:1], 0
    """)
    stamp(0)
    a(f"""
    v_lshrrev_b32 v4, 6, v0
    v_and_b32 v1, 63, v0
    v_readfirstlane_b32 s{S_W}, v4
    s_lshr_b32 s{S_H}, s2, 5
    s_and_b32 s{S_J}, s2, 31
    s_cmp_lg_u32 s{S_W}, 0
    s_cbranch_scc1 L_cons
    """)
    V_BT, V_BT2, V_OK, V_OV, V_CW, V_FA, V_PUB, V_CA, V_U2 = 2, 3, 8, 16, 24, 26, 27, 28, 29
    a.c("---------------- loader ----------------")
    a(f"""
    v_lshlrev_b32 v{V_BT}, 5, v1
    v_add_u32 v{V_BT}, s{S_J}, v{V_BT}
    v_lshlrev_b32 v6, 2, v{V_BT}
    s_lshl_b32 s{S_TMP}, s{S_H}, 9
    v_lshrrev_b32 v4, 5, v1
    v_and_b32 v5, 31, v1
    v_lshl_add_u32 v{V_OV}, v5, 4, s{S_TMP}
    v_lshl_add_u32 v{V_OV}, v4, 12, v{V_OV}     ; V: par*4096 + h*512 + c*16
    v_xor_b32 v5, v5, v4
    v_lshl_add_u32 v{V_OK}, v5, 4, s{S_TMP}
    v_lshl_add_u32 v{V_OK}, v4, 12, v{V_OK}
    s_barrier
    s_waitcnt lgkmcnt(0)
    s_load_dword s{S_CL}, s[12:13], 0
    """)
    srd(S_BT, 10, 16384)
    a(f"""
    buffer_load_dword v4, v6, s[{S_BT}:{S_BT+3}], 0 offen
    v_add_u32 v7, 0x2000, v6
    buffer_load_dword v5, v7, s[{S_BT}:{S_BT+3}], 0 offen
    """)
    srd(S_K, 6, KV_BYTES)
    srd(S_V, 8, KV_BYTES)
    for i in range(1, 8):
        a(f"v_add_u32 v{V_OK+i}, {i*8192 - (i & 3)*KPAD}, v{V_OK}")
        a(f"v_add_u32 v{V_OV+i}, {i*8192 - (i & 3)*1024}, v{V_OV}")
    a(f"""
    v_lshlrev_b32 v{V_FA}, 2, v1
    v_add_u32 v{V_FA}, {READY}, v{V_FA}
    v_mov_b32 v{V_CA}, {CONS}
    v_mov_b32 v{V_U2}, 0
    v_mov_b32 v{V_CW}, 0
    v_mov_b32 v{V_CW+1}, 0
    s_mov_b32 s{S_U}, 0
    s_mov_b32 s{S_SLOT}, 0
    s_waitcnt lgkmcnt(0)
    """)
    calc_np_nk()
    a(f"""
    s_waitcnt vmcnt(0)
    v_lshlrev_b32 v{V_BT}, 16, v4
    v_lshlrev_b32 v{V_BT2}, 16, v5
    s_cmp_eq_u32 s{S_NK}, 0
    s_cbranch_scc1 L_end
    """)
    stamp(1)
    a(f"""
    L_ld_loop:
    v_readlane_b32 s{S_OFF}, v{V_BT}, s{S_U}
    v_readlane_b32 s{S_T2}, v{V_BT2}, s{S_U}
    L_ld_chk:
    s_waitcnt lgkmcnt(0)
    v_readfirstlane_b32 s{S_TMP}, v{V_CW}
    v_readfirstlane_b32 s{S_RDY}, v{V_CW+1}
    ds_read_b64 v[{V_CW}:{V_CW+1}], v{V_CA}
    s_bitcmp1_b32 s{S_U}, 0
    s_cselect_b32 s{S_TMP}, s{S_RDY}, s{S_TMP}
    s_add_u32 s{S_TMP}, s{S_TMP}, {R-1}
    s_cmp_ge_u32 s{S_TMP}, s{S_U}
    s_cbranch_scc0 L_ld_chk
    s_cmp_ge_u32 s{S_U}, 64
    s_cselect_b32 s{S_OFF}, s{S_T2}, s{S_OFF}
    """)
    for idx in range(16):
        which, i = idx >> 3, idx & 7
        if i % 4 == 0:
            base = (i // 4) * 4 * KPAD if which == 0 else KT + i * 1024
            a(f"s_add_u32 m0, s{S_SLOT}, {base}")
        a(f"s_waitcnt vmcnt({W-1})")
        srdn = (S_K, S_V)[which]
        voff = (V_OK, V_OV)[which] + i
        step = (KPAD, 1024)[which]
        a(f"buffer_load_dwordx4 v{voff}, s[{srdn}:{srdn+3}], s{S_OFF} offen offset:{(i & 3)*step}{pol} lds")
        if (idx + 1 - W) % 8 == 0:
            a(f"v_add_u32 v{V_PUB}, {(idx + 1 - W)//8}, v{V_U2}")
            a(f"ds_write_b32 v{V_FA}, v{V_PUB}")
    a(f"""
    v_add_u32 v{V_U2}, 2, v{V_U2}
    s_add_u32 s{S_SLOT}, s{S_SLOT}, {SLOT}
    s_cmp_ge_u32 s{S_SLOT}, {R*SLOT}
    s_cselect_b32 s{S_SLOT}, 0, s{S_SLOT}
    s_add_u32 s{S_U}, s{S_U}, 1
    s_cmp_lt_u32 s{S_U}, s{S_NK}
    s_cbranch_scc1 L_ld_loop
    """)
    for r in range((W - 1) // 8, -1, -1):
        a(f"""
        v_add_u32 v{V_PUB}, {-r}, v{V_U2}
        s_waitcnt vmcnt({8*r})
        ds_write_b32 v{V_FA}, v{V_PUB}
        """)
    stamp(3)
    a("s_branch L_end")

    V_KB, V_VB, V_KA, V_VA, V_RA, V_CO = 2, 3, 4, 5, 6, 7
    V_MASK, V_M, V_L, V_TOK, V_ALPHA, V_S, V_T, V_O, V_A, V_Q, V_K, V_V = 8, 12, 13, 14, 15, 16, 20, 24, 32, 48, 80, 112
    V_CNT = 144
    NV = 146
    a.c("---------------- consumers ----------------")
    a(f"""
    L_cons:
    v_mov_b32 v{V_T}, 0
    v_mov_b32 v{V_T+1}, 0
    v_lshlrev_b32 v{V_T+2}, 2, v1
    v_lshlrev_b32 v{V_CO}, 3, v1
    ds_write_b32 v{V_T+2}, v{V_T} offset:{READY}
    ds_write_b64 v{V_CO}, v[{V_T}:{V_T+1}] offset:{CONS}
    """ if READY < 65536 else f"""
    L_cons:
    v_mov_b32 v{V_T}, 0
    v_mov_b32 v{V_T+1}, 0
    v_lshlrev_b32 v{V_T+2}, 2, v1
    v_add_u32 v{V_T+2}, {READY}, v{V_T+2}
    v_lshlrev_b32 v{V_CO}, 3, v1
    v_add_u32 v{V_CO}, {CONS}, v{V_CO}
    ds_write_b32 v{V_T+2}, v{V_T}
    ds_write_b64 v{V_CO}, v[{V_T}:{V_T+1}]
    """)
    assert READY >= 65536
    a(f"""
    s_sub_u32 s{S_W}, s{S_W}, 1
    v_and_b32 v{V_T+1}, 15, v0                  ; n / m
    v_bfe_u32 v{V_T+2}, v0, 4, 2                ; g
    s_waitcnt lgkmcnt(0)
    s_barrier
    s_load_dword s{S_CL}, s[12:13], 0
    ; Q: lane (g,n): (2h + (n&1))*512 + g*16
    v_and_b32 v{V_S}, 1, v0
    v_lshlrev_b32 v{V_S+1}, 9, v{V_S}
    v_lshl_add_u32 v{V_S+1}, v{V_T+2}, 4, v{V_S+1}
    s_lshl_b32 s{S_TMP}, s{S_H}, 10
    """)
    srd(S_Q, 4, 8192)
    for jj in range(8):
        a(f"buffer_load_dwordx4 {vr(V_Q+4*jj)}, v{V_S+1}, s[{S_Q}:{S_Q+3}], s{S_TMP} offen offset:{jj*64}")
    srd(S_WS, 18, 256 * WS_SLOT + 65536 * 16)
    srd(S_OUT, 14, 8192)
    srd(S_DBG, 16, 256)
    a(f"""
    s_mul_i32 s{S_WSO}, s2, {WS_SLOT}
    s_mov_b32 s{S_C}, {C_SCALE:#x}
    v_lshrrev_b32 v{V_KB}, 1, v{V_T+1}
    v_mul_u32_u24 v{V_KB}, {KPAD}, v{V_KB}
    v_lshl_add_u32 v{V_KB}, v{V_S}, 9, v{V_KB}
    v_xor_b32 v{V_S+2}, v{V_T+2}, v{V_S}
    v_lshl_add_u32 v{V_KB}, v{V_S+2}, 4, v{V_KB}
    v_lshlrev_b32 v{V_VB}, 11, v{V_T+2}
    v_lshl_add_u32 v{V_VB}, v{V_T+1}, 4, v{V_VB}
    v_add_u32 v{V_VB}, {KT}, v{V_VB}
    v_mov_b32 v{V_RA}, {READY}
    s_lshl_b32 s{S_TMP}, s{S_W}, 2
    v_add_u32 v{V_CO}, s{S_TMP}, v{V_CO}
    v_lshlrev_b32 v{V_TOK}, 2, v{V_T+2}         ; 4g
    v_bfe_u32 v{V_S+2}, v0, 1, 1
    v_lshlrev_b32 v{V_S+2}, 4, v{V_S+2}
    v_mov_b32 v{V_S+3}, 0xffff
    v_lshlrev_b32 v{V_S+3}, v{V_S+2}, v{V_S+3}
    v_bfe_u32 v{V_S+2}, v0, 2, 2
    """)
    for j in range(4):
        a(f"""
        v_cmp_eq_u32 vcc, {j}, v{V_S+2}
        s_nop 1
        v_cndmask_b32 v{V_MASK+j}, 0, v{V_S+3}, vcc
        """)
    a(f"""
    v_lshlrev_b32 v{V_T}, 4, v1                 ; lane*16
    s_cmp_lg_u32 s{S_W}, 0
    s_cbranch_scc1 L_noclear
    v_mov_b32 v{V_O}, -1
    v_mov_b32 v{V_O+1}, -1
    v_mov_b32 v{V_O+2}, -1
    v_mov_b32 v{V_O+3}, -1
    buffer_store_dwordx4 {vr(V_O)}, v{V_T}, s[{S_WS}:{S_WS+3}], s{S_WSO} offen sc1
    buffer_store_dwordx4 {vr(V_O)}, v{V_T}, s[{S_WS}:{S_WS+3}], s{S_WSO} offen offset:1024 sc1
    s_mov_b64 exec, 1
    buffer_store_dwordx4 {vr(V_O)}, v{V_T}, s[{S_WS}:{S_WS+3}], s{S_WSO} offen offset:2048 sc1
    v_mov_b32 v{V_S}, 1
    s_lshl_b32 s{S_TMP}, s{S_H}, 5
    s_waitcnt vmcnt(0)
    buffer_atomic_add v{V_S}, v{V_T}, s[{S_DBG}:{S_DBG+3}], s{S_TMP} offen
    s_mov_b64 exec, -1
    L_noclear:
    v_mov_b32 v{V_M}, {NEG_BIG:#x}
    v_mov_b32 v{V_L}, 0
    v_mov_b32 v{V_CNT}, 0
    v_mov_b32 v{V_CNT+1}, 0
    """)
    for r in range(8):
        a(f"v_mov_b32 v{V_O+r}, 0")
    a("s_waitcnt lgkmcnt(0)")
    calc_np_nk()
    a(f"""
    s_mov_b32 s{S_U}, s{S_W}
    s_mul_i32 s{S_SLOT}, s{S_W}, {SLOT}
    s_lshl_b32 s{S_TMP}, s{S_W}, 5
    s_add_u32 s{S_TMP}, s{S_TMP}, s{S_J}
    s_lshl_b32 s{S_TMP}, s{S_TMP}, 4
    s_sub_i32 s{S_REM}, s{S_CL}, s{S_TMP}
    s_mov_b32 s{S_RDY}, 0
    s_lshl_b32 s{S_T2}, s{S_H}, 5
    s_waitcnt vmcnt(0)
    s_cmp_ge_u32 s{S_U}, s{S_NK}
    s_cbranch_scc1 L_c_done
    L_c_loop:
    s_lshl_b32 s{S_NEED}, s{S_U}, 1
    v_add_u32 v{V_KA}, s{S_SLOT}, v{V_KB}
    v_add_u32 v{V_VA}, s{S_SLOT}, v{V_VB}
    s_add_u32 s{S_U}, s{S_U}, 2
    s_cmp_lt_u32 s{S_U}, s{S_NK}
    s_cbranch_scc1 L_c_pk
    buffer_load_dword v{V_CNT}, v{V_CNT+1}, s[{S_DBG}:{S_DBG+3}], s{S_T2} offen sc1
    L_c_pk:
    s_cmp_gt_i32 s{S_RDY}, s{S_NEED}
    s_cbranch_scc1 L_c_k
    ds_read_b32 v{V_T}, v{V_RA}
    s_waitcnt lgkmcnt(0)
    v_readfirstlane_b32 s{S_RDY}, v{V_T}
    s_branch L_c_pk
    L_c_k:
    """)
    for jj in range(8):
        a(f"ds_read_b128 {vr(V_K+4*jj)}, v{V_KA} offset:{jj*64}")
    a(f"s_add_u32 s{S_NEED}, s{S_NEED}, 1")
    for jj in range(8):
        a(f"s_waitcnt lgkmcnt({7-jj})")
        c = "0" if jj == 0 else vr(V_S)
        a(f"v_mfma_f32_16x16x32_bf16 {vr(V_S)}, {vr(V_K+4*jj)}, {vr(V_Q+4*jj)}, {c}")
    a(f"""
    s_add_u32 s{S_SLOT}, s{S_SLOT}, {2*SLOT}
    s_cmp_ge_u32 s{S_SLOT}, {R*SLOT}
    s_cselect_b32 s{S_TMP}, {R*SLOT}, 0
    s_sub_u32 s{S_SLOT}, s{S_SLOT}, s{S_TMP}
    s_nop 1
    s_cmp_ge_i32 s{S_REM}, 16
    s_cbranch_scc1 L_nomask
    v_mov_b32 v{V_T}, {MASKED_RAW:#x}
    v_sub_u32 v{V_T+1}, s{S_REM}, v{V_TOK}
    """)
    for r in range(4):
        a(f"""
        v_cmp_lt_i32 vcc, {r}, v{V_T+1}
        s_nop 1
        v_cndmask_b32 v{V_S+r}, v{V_T}, v{V_S+r}, vcc
        """)
    a(f"""
    L_nomask:
    v_max3_f32 v{V_T}, v{V_S}, v{V_S+1}, v{V_S+2}
    v_max_f32 v{V_T}, v{V_T}, v{V_S+3}
    v_mov_b32 v{V_T+1}, v{V_T}
    s_sub_i32 s{S_REM}, s{S_REM}, 1024
    s_nop 0
    v_permlane16_swap_b32 v{V_T}, v{V_T+1}
    v_max_f32 v{V_T}, v{V_T}, v{V_T+1}
    v_mov_b32 v{V_T+1}, v{V_T}
    s_nop 1
    v_permlane32_swap_b32 v{V_T}, v{V_T+1}
    v_max_f32 v{V_T}, v{V_T}, v{V_T+1}
    v_mul_f32 v{V_T}, s{S_C}, v{V_T}
    v_max_f32 v{V_T}, v{V_T}, v{V_M}
    v_sub_f32 v{V_ALPHA}, v{V_M}, v{V_T}
    v_mov_b32 v{V_M}, v{V_T}
    v_exp_f32 v{V_ALPHA}, v{V_ALPHA}
    """)
    for r in range(4):
        a(f"v_fma_f32 v{V_S+r}, v{V_S+r}, s{S_C}, -v{V_M}")
    for r in range(4):
        a(f"v_exp_f32 v{V_S+r}, v{V_S+r}")

    def qp(r):
        return "quad_perm:[0,0,2,2] row_mask:0xf bank_mask:0xf" if r % 2 == 0 else "quad_perm:[1,1,3,3] row_mask:0xf bank_mask:0xf"
    for r in range(8):
        a(f"v_mul_f32_dpp v{V_O+r}, v{V_ALPHA}, v{V_O+r} {qp(r)}")
    a(f"""
    v_add_f32 v{V_T}, v{V_S}, v{V_S+1}
    v_add_f32 v{V_T+1}, v{V_S+2}, v{V_S+3}
    v_add_f32 v{V_T}, v{V_T}, v{V_T+1}
    v_fma_f32 v{V_L}, v{V_L}, v{V_ALPHA}, v{V_T}
    """)
    for u in range(4):
        a(f"v_cvt_pk_bf16_f32 v{V_S+u}, v{V_S+u}, v{V_S+u}")
    for u in range(4):
        for j in range(4):
            a(f"v_and_b32 v{V_A+4*u+j}, v{V_S+u}, v{V_MASK+j}")
    a(f"""
    L_c_pv:
    s_cmp_gt_i32 s{S_RDY}, s{S_NEED}
    s_cbranch_scc1 L_c_v
    ds_read_b32 v{V_T}, v{V_RA}
    s_waitcnt lgkmcnt(0)
    v_readfirstlane_b32 s{S_RDY}, v{V_T}
    s_branch L_c_pv
    L_c_v:
    """)
    for u in range(4):
        for hf in range(2):
            a(f"ds_read_b128 {vr(V_V+8*u+4*hf)}, v{V_VA} offset:{u*512+hf*256}")
    a(f"v_add_u32 v{V_T}, -1, s{S_U}" if False else f"v_mov_b32 v{V_T}, s{S_U}")
    a(f"v_add_u32 v{V_T}, -1, v{V_T}")
    k = 0
    for u in range(4):
        for hf in range(2):
            a(f"s_waitcnt lgkmcnt({7-k})")
            if k == 7:
                a(f"ds_write_b32 v{V_CO}, v{V_T}")
            a(f"v_mfma_f32_16x16x32_bf16 {vr(V_O+4*hf)}, {vr(V_A+4*u)}, {vr(V_V+8*u+4*hf)}, {vr(V_O+4*hf)}")
            k += 1
    a(f"""
    s_cmp_lt_u32 s{S_U}, s{S_NK}
    s_cbranch_scc1 L_c_loop
    L_c_done:
    """)
    stamp(3)
    a(f"""
    v_mov_b32 v{V_T+1}, v{V_L}
    v_lshlrev_b32 v{V_T}, 4, v1                 ; lane*16
    v_lshlrev_b32 v{V_T+2}, 3, v1               ; lane*8
    v_permlane16_swap_b32 v{V_L}, v{V_T+1}
    v_add_f32 v{V_L}, v{V_L}, v{V_T+1}
    v_mov_b32 v{V_T+1}, v{V_L}
    v_add_u32 v{V_KA}, {MERGE}, v{V_T}
    v_add_u32 v{V_VA}, {MERGE+2048}, v{V_T+2}
    v_permlane32_swap_b32 v{V_L}, v{V_T+1}
    v_add_f32 v{V_L}, v{V_L}, v{V_T+1}
    s_add_u32 s{S_TMP}, s{S_NK}, 1
    s_and_b32 s{S_TMP}, s{S_TMP}, 1
    s_cmp_eq_u32 s{S_TMP}, s{S_W}
    s_cbranch_scc1 L_fin
    ds_write_b128 v{V_KA}, {vr(V_O)}
    ds_write_b128 v{V_KA}, {vr(V_O+4)} offset:1024
    ds_write_b64 v{V_VA}, v[{V_M}:{V_L}]
    s_waitcnt lgkmcnt(0)
    s_barrier
    s_branch L_end
    L_fin:
    s_barrier
    ds_read_b64 v[{V_A}:{V_A+1}], v{V_VA}
    ds_read_b128 {vr(V_K)}, v{V_KA}
    ds_read_b128 {vr(V_K+4)}, v{V_KA} offset:1024
    v_and_b32 v{V_T+2}, 1, v1
    v_lshlrev_b32 v{V_T+2}, 3, v{V_T+2}         ; q*8
    s_waitcnt lgkmcnt(2)
    v_max_f32 v{V_T+1}, v{V_M}, v{V_A}
    v_sub_f32 v{V_ALPHA}, v{V_M}, v{V_T+1}
    v_sub_f32 v{V_A}, v{V_A}, v{V_T+1}
    v_exp_f32 v{V_ALPHA}, v{V_ALPHA}
    v_exp_f32 v{V_A}, v{V_A}
    v_min_u32 v{V_M}, -2, v{V_T+1}
    v_mul_f32 v{V_L}, v{V_L}, v{V_ALPHA}
    v_fmac_f32 v{V_L}, v{V_A}, v{V_A+1}
    """)
    for r in range(8):
        a(f"v_mul_f32_dpp v{V_O+r}, v{V_ALPHA}, v{V_O+r} {qp(r)}")
    a("s_waitcnt lgkmcnt(0)")
    for r in range(8):
        a(f"v_fmac_f32_dpp v{V_O+r}, v{V_A}, v{V_K+r} {qp(r)}")
    a(f"v_min_u32 v{V_L}, -2, v{V_L}")
    for r in range(8):
        a(f"v_min_u32 v{V_O+r}, -2, v{V_O+r}")
    a(f"""
    buffer_store_dwordx4 {vr(V_O)}, v{V_T}, s[{S_WS}:{S_WS+3}], s{S_WSO} offen sc1
    buffer_store_dwordx4 {vr(V_O+4)}, v{V_T}, s[{S_WS}:{S_WS+3}], s{S_WSO} offen offset:1024 sc1
    s_mov_b64 exec, 3
    buffer_store_dwordx2 v[{V_M}:{V_L}], v{V_T+2}, s[{S_WS}:{S_WS+3}], s{S_WSO} offen offset:2048 sc1
    s_mov_b64 exec, -1
    """)
    stamp(4)
    a(f"""
    v_lshrrev_b32 v{V_KA}, 1, v1
    v_mul_u32_u24 v{V_KA}, {WS_SLOT}, v{V_KA}
    v_lshl_add_u32 v{V_VA}, v{V_T+2}, 2, v{V_KA} ; + 32*(l&1)
    s_lshl_b32 s{S_TMP}, s{S_J}, 6
    v_add_u32 v{V_VA}, s{S_TMP}, v{V_VA}
    s_mul_i32 s{S_OFF}, s{S_H}, {32*WS_SLOT}
    s_waitcnt vmcnt(3)
    L_cnt:
    v_readfirstlane_b32 s{S_TMP}, v{V_CNT}
    s_cmp_eq_u32 s{S_TMP}, 32
    s_cbranch_scc1 L_poll
    buffer_load_dword v{V_CNT}, v{V_CNT+1}, s[{S_DBG}:{S_DBG+3}], s{S_T2} offen sc1
    s_waitcnt vmcnt(0)
    s_branch L_cnt
    L_poll:
    buffer_load_dwordx4 {vr(V_A)}, v{V_KA}, s[{S_WS}:{S_WS+3}], s{S_OFF} offen offset:2048 sc1
    buffer_load_dwordx4 {vr(V_K)}, v{V_VA}, s[{S_WS}:{S_WS+3}], s{S_OFF} offen sc1
    buffer_load_dwordx4 {vr(V_K+4)}, v{V_VA}, s[{S_WS}:{S_WS+3}], s{S_OFF} offen offset:16 sc1
    s_waitcnt vmcnt(2)
    v_max3_u32 v{V_T}, v{V_A}, v{V_A+1}, v{V_A+2}
    s_waitcnt vmcnt(1)
    v_max3_u32 v{V_T}, v{V_T}, v{V_A+3}, v{V_K}
    v_max3_u32 v{V_T}, v{V_T}, v{V_K+1}, v{V_K+2}
    s_waitcnt vmcnt(0)
    v_max3_u32 v{V_T}, v{V_T}, v{V_K+3}, v{V_K+4}
    v_max3_u32 v{V_T}, v{V_T}, v{V_K+5}, v{V_K+6}
    v_max_u32 v{V_T}, v{V_T}, v{V_K+7}
    v_cmp_eq_u32 vcc, -1, v{V_T}
    s_mov_b64 exec, vcc
    s_cbranch_execnz L_poll
    s_mov_b64 exec, -1
    """)
    stamp(5)
    M0, L0, M1, L1 = V_A, V_A + 1, V_A + 2, V_A + 3
    X0, X1, T0, T1 = V_A + 4, V_A + 5, V_A + 6, V_A + 7

    def dpp(op, d, s0, s1, ctl):
        a(f"{op}_dpp v{d}, v{s0}, v{s1} {ctl} row_mask:0xf bank_mask:0xf")
    a("s_nop 0")
    dpp("v_max_f32", X0, M0, M0, "row_ror:2")
    dpp("v_max_f32", X1, M1, M1, "row_ror:2")
    for rot in (4, 8):
        a("s_nop 0")
        dpp("v_max_f32", X0, X0, X0, f"row_ror:{rot}")
        dpp("v_max_f32", X1, X1, X1, f"row_ror:{rot}")
    for sw in ("v_permlane16_swap_b32", "v_permlane32_swap_b32"):
        a(f"""
        v_mov_b32 v{T0}, v{X0}
        v_mov_b32 v{T1}, v{X1}
        s_nop 0
        {sw} v{X0}, v{T0}
        {sw} v{X1}, v{T1}
        v_max_f32 v{X0}, v{X0}, v{T0}
        v_max_f32 v{X1}, v{X1}, v{T1}
        """)
    a(f"""
    v_sub_f32 v{M0}, v{M0}, v{X0}
    v_sub_f32 v{M1}, v{M1}, v{X1}
    v_exp_f32 v{M0}, v{M0}
    v_exp_f32 v{M1}, v{M1}
    v_bfe_u32 v{T0}, v1, 4, 1
    v_mul_f32 v{L0}, v{L0}, v{M0}
    v_mul_f32 v{L1}, v{L1}, v{M1}
    """)
    for r in range(8):
        a(f"v_mul_f32 v{V_K+r}, v{V_K+r}, v{(M0, M1)[r & 1]}")
    a(f"""
    v_lshlrev_b32 v{T0}, 9, v{T0}
    v_permlane16_swap_b32 v{L0}, v{L1}
    v_permlane16_swap_b32 v{V_K}, v{V_K+1}
    v_permlane16_swap_b32 v{V_K+2}, v{V_K+3}
    v_permlane16_swap_b32 v{V_K+4}, v{V_K+5}
    v_permlane16_swap_b32 v{V_K+6}, v{V_K+7}
    v_add_f32 v{L0}, v{L0}, v{L1}
    v_add_f32 v{V_K}, v{V_K}, v{V_K+1}
    v_add_f32 v{V_K+2}, v{V_K+2}, v{V_K+3}
    v_add_f32 v{V_K+4}, v{V_K+4}, v{V_K+5}
    v_add_f32 v{V_K+6}, v{V_K+6}, v{V_K+7}
    v_mov_b32 v{L1}, v{L0}
    v_lshrrev_b32 v{T1}, 5, v1                  ; sel
    v_permlane32_swap_b32 v{V_K}, v{V_K+4}
    v_permlane32_swap_b32 v{V_K+2}, v{V_K+6}
    v_permlane32_swap_b32 v{L0}, v{L1}
    v_add_f32 v{V_K}, v{V_K}, v{V_K+4}
    v_add_f32 v{V_K+2}, v{V_K+2}, v{V_K+6}
    v_add_f32 v{L0}, v{L0}, v{L1}
    """)
    for rot in (2, 4, 8):
        dpp("v_add_f32", V_K, V_K, V_K, f"row_ror:{rot}")
        dpp("v_add_f32", V_K + 2, V_K + 2, V_K + 2, f"row_ror:{rot}")
        dpp("v_add_f32", L0, L0, L0, f"row_ror:{rot}")
    a(f"""
    v_lshl_add_u32 v{T0}, v{T1}, 4, v{T0}       ; + sel*16
    v_lshl_add_u32 v{T0}, v{V_T+2}, 2, v{T0}    ; + parity*32
    v_rcp_f32 v{L1}, v{L0}
    s_and_b32 s{S_TMP}, s{S_J}, 3
    s_lshl_b32 s{S_TMP}, s{S_TMP}, 6            ; 4*(j&3)*16
    s_bfe_u32 s{S_T2}, s{S_J}, 0x20002
    s_lshl_b32 s{S_T2}, s{S_T2}, 2              ; g'*4
    s_add_u32 s{S_TMP}, s{S_TMP}, s{S_T2}
    v_fma_f32 v{X0}, -v{L0}, v{L1}, 1.0
    v_fma_f32 v{L1}, v{X0}, v{L1}, v{L1}
    s_lshr_b32 s{S_T2}, s{S_J}, 4
    s_lshl_b32 s{S_T2}, s{S_T2}, 8              ; hf*256
    s_add_u32 s{S_TMP}, s{S_TMP}, s{S_T2}
    s_lshl_b32 s{S_T2}, s{S_H}, 10
    s_add_u32 s{S_TMP}, s{S_TMP}, s{S_T2}
    v_mul_f32 v{V_K}, v{V_K}, v{L1}
    v_mul_f32 v{V_K+2}, v{V_K+2}, v{L1}
    v_cvt_pk_bf16_f32 v{V_K}, v{V_K}, v{V_K+2}
    s_mov_b32 exec_lo, 0x00030003
    s_mov_b32 exec_hi, 0x00030003
    buffer_store_dword v{V_K}, v{T0}, s[{S_OUT}:{S_OUT+3}], s{S_TMP} offen
    """)
    stamp(7)
    a("L_end:")
    if o.stamps:
        a(f"""
        s_waitcnt lgkmcnt(0) vmcnt(0)
        s_mov_b64 exec, -1
        v_lshrrev_b32 v4, 6, v0
        s_nop 0
        v_readfirstlane_b32 s{S_W}, v4
        """)
        srd(S_WS, 18, 256 * WS_SLOT + 65536 * 16)
        a(f"""
        s_getreg_b32 s{ST0+16}, hwreg(HW_REG_XCC_ID)
        s_getreg_b32 s{ST0+17}, hwreg(HW_REG_HW_ID)
        s_mul_i32 s{S_TMP}, s2, 3
        s_add_u32 s{S_TMP}, s{S_TMP}, s{S_W}
        s_lshl_b32 s{S_TMP}, s{S_TMP}, 7
        s_add_u32 s{S_TMP}, s{S_TMP}, {256*WS_SLOT}
        s_mov_b64 exec, 1
        v_mov_b32 v4, 0
        """)
        for i in range(18):
            a(f"v_mov_b32 v5, s{ST0+i}")
            a(f"buffer_store_dword v5, v4, s[{S_WS}:{S_WS+3}], s{S_TMP} offen offset:{4*i}")
            a("s_nop 1")
    a("L_exit:")
    a("s_endpgm")

    out = HEADER + f"; @launch grid=(256,1,1) block=(192,1,1) lds={LDS_BYTES}\n"
    out += f""".amdgcn_target "amdgcn-amd-amdhsa--gfx950"
.text
.globl {NAME}_kernel
.p2align 8
.type {NAME}_kernel,@function
"""
    out += a.text()
    acc = (NV + 3) // 4 * 4
    out += f""".section .rodata,"a"
.p2align 6
.amdhsa_kernel {NAME}_kernel
  .amdhsa_next_free_vgpr {NV}
  .amdhsa_next_free_sgpr 96
  .amdhsa_accum_offset {acc}
  .amdhsa_group_segment_fixed_size 0
  .amdhsa_kernarg_size 64
  .amdhsa_user_sgpr_count 2
  .amdhsa_user_sgpr_kernarg_segment_ptr 1
  .amdhsa_system_sgpr_workgroup_id_x 1
.end_amdhsa_kernel
"""
    return out


if __name__ == "__main__":
    p = argparse.ArgumentParser()
    p.add_argument("-o", default="cdna_kernels/" + NAME + ".s")
    p.add_argument("--w", type=int, default=20)
    p.add_argument("--ring", type=int, default=8)
    p.add_argument("--pol", default="nt")
    p.add_argument("--stamps", action="store_true")
    o = p.parse_args()
    open(o.o, "w").write(gen(o))
```

```python
import argparse
from gen import A, vr, HEADER, NAME, KV_BYTES, C_SCALE, NEG_BIG, MASKED_RAW

WS_SLOT = 2176
KPAD = 1056
KT = 8 * KPAD
SLOT = KT + 8192


def gen(o):
    W, R = o.w, o.ring
    pol = (" " + o.pol) if o.pol else ""
    a = A()
    READY = R * SLOT
    CONS = READY + 256
    MERGE = CONS + 512
    LDS_BYTES = MERGE + 2048 + 512
    S_K, S_V, S_Q, S_WS, S_OUT, S_DBG, S_BT = 20, 24, 28, 32, 36, 40, 44
    (S_CL, S_NP, S_NK, S_U, S_REM, S_OFF, S_W, S_H, S_J, S_C, S_TMP, S_T2, S_SLOT, S_RDY, S_NEED,
     S_WSO) = range(48, 64)
    ST0 = 64

    def srd(base, ptr, nbytes):
        a(f"""
        s_mov_b32 s{base}, s{ptr}
        s_and_b32 s{base+1}, s{ptr+1}, 0xffff
        s_mov_b32 s{base+2}, {nbytes:#x}
        s_mov_b32 s{base+3}, 0x20000
        """)

    def stamp(i):
        if o.stamps:
            a(f"s_memrealtime s[{ST0+2*i}:{ST0+1+2*i}]")

    def calc_np_nk():
        a(f"""
        s_min_i32 s{S_TMP}, s{S_CL}, 0x10000
        s_add_i32 s{S_NP}, s{S_TMP}, 15
        s_lshr_b32 s{S_NP}, s{S_NP}, 4
        s_cmp_lt_i32 s{S_CL}, 1
        s_cselect_b32 s{S_NP}, 0x1000, s{S_NP}
        s_cselect_b32 s{S_CL}, 0, s{S_TMP}
        s_sub_i32 s{S_NK}, s{S_NP}, s{S_J}
        s_add_i32 s{S_NK}, s{S_NK}, 31
        s_lshr_b32 s{S_NK}, s{S_NK}, 5
        """)

    a(f"{NAME}_kernel:")
    if o.stamps:
        for i in range(18):
            a(f"s_mov_b32 s{ST0+i}, 0")
    a(f"""
    s_cmp_ge_u32 s2, 256
    s_cbranch_scc1 L_exit
    s_load_dwordx16 s[4:19], s[0:1], 0
    """)
    stamp(0)
    a(f"""
    v_lshrrev_b32 v4, 6, v0
    v_and_b32 v1, 63, v0
    v_readfirstlane_b32 s{S_W}, v4
    s_lshr_b32 s{S_H}, s2, 5
    s_and_b32 s{S_J}, s2, 31
    s_cmp_lg_u32 s{S_W}, 0
    s_cbranch_scc1 L_cons
    """)
    V_BT, V_BT2, V_OK, V_OV, V_CW, V_FA, V_PUB, V_CA, V_U2 = 2, 3, 8, 16, 24, 26, 27, 28, 29
    a.c("---------------- loader ----------------")
    a(f"""
    v_lshlrev_b32 v{V_BT}, 5, v1
    v_add_u32 v{V_BT}, s{S_J}, v{V_BT}
    v_lshlrev_b32 v6, 2, v{V_BT}
    s_lshl_b32 s{S_TMP}, s{S_H}, 9
    v_lshrrev_b32 v4, 5, v1
    v_and_b32 v5, 31, v1
    v_lshl_add_u32 v{V_OV}, v5, 4, s{S_TMP}
    v_lshl_add_u32 v{V_OV}, v4, 12, v{V_OV}     ; V: par*4096 + h*512 + c*16
    v_xor_b32 v5, v5, v4
    v_lshl_add_u32 v{V_OK}, v5, 4, s{S_TMP}
    v_lshl_add_u32 v{V_OK}, v4, 12, v{V_OK}
    s_barrier
    s_waitcnt lgkmcnt(0)
    s_load_dword s{S_CL}, s[12:13], 0
    """)
    srd(S_BT, 10, 16384)
    a(f"""
    buffer_load_dword v4, v6, s[{S_BT}:{S_BT+3}], 0 offen
    v_add_u32 v7, 0x2000, v6
    buffer_load_dword v5, v7, s[{S_BT}:{S_BT+3}], 0 offen
    """)
    srd(S_K, 6, KV_BYTES)
    srd(S_V, 8, KV_BYTES)
    for i in range(1, 8):
        a(f"v_add_u32 v{V_OK+i}, {i*8192 - (i & 3)*KPAD}, v{V_OK}")
        a(f"v_add_u32 v{V_OV+i}, {i*8192 - (i & 3)*1024}, v{V_OV}")
    a(f"""
    v_lshlrev_b32 v{V_FA}, 2, v1
    v_add_u32 v{V_FA}, {READY}, v{V_FA}
    v_mov_b32 v{V_CA}, {CONS}
    v_mov_b32 v{V_U2}, 0
    v_mov_b32 v{V_CW}, 0
    v_mov_b32 v{V_CW+1}, 0
    s_mov_b32 s{S_U}, 0
    s_mov_b32 s{S_SLOT}, 0
    s_waitcnt lgkmcnt(0)
    """)
    calc_np_nk()
    a(f"""
    s_waitcnt vmcnt(0)
    v_lshlrev_b32 v{V_BT}, 16, v4
    v_lshlrev_b32 v{V_BT2}, 16, v5
    s_cmp_eq_u32 s{S_NK}, 0
    s_cbranch_scc1 L_end
    """)
    stamp(1)
    a(f"""
    L_ld_loop:
    v_readlane_b32 s{S_OFF}, v{V_BT}, s{S_U}
    v_readlane_b32 s{S_T2}, v{V_BT2}, s{S_U}
    L_ld_chk:
    s_waitcnt lgkmcnt(0)
    v_readfirstlane_b32 s{S_TMP}, v{V_CW}
    v_readfirstlane_b32 s{S_RDY}, v{V_CW+1}
    ds_read_b64 v[{V_CW}:{V_CW+1}], v{V_CA}
    s_bitcmp1_b32 s{S_U}, 0
    s_cselect_b32 s{S_TMP}, s{S_RDY}, s{S_TMP}
    s_add_u32 s{S_TMP}, s{S_TMP}, {R-1}
    s_cmp_ge_u32 s{S_TMP}, s{S_U}
    s_cbranch_scc0 L_ld_chk
    s_cmp_ge_u32 s{S_U}, 64
    s_cselect_b32 s{S_OFF}, s{S_T2}, s{S_OFF}
    """)
    for idx in range(16):
        which, i = idx >> 3, idx & 7
        if i % 4 == 0:
            base = (i // 4) * 4 * KPAD if which == 0 else KT + i * 1024
            a(f"s_add_u32 m0, s{S_SLOT}, {base}")
        a(f"s_waitcnt vmcnt({W-1})")
        srdn = (S_K, S_V)[which]
        voff = (V_OK, V_OV)[which] + i
        step = (KPAD, 1024)[which]
        a(f"buffer_load_dwordx4 v{voff}, s[{srdn}:{srdn+3}], s{S_OFF} offen offset:{(i & 3)*step}{pol} lds")
        if (idx + 1 - W) % 8 == 0:
            a(f"v_add_u32 v{V_PUB}, {(idx + 1 - W)//8}, v{V_U2}")
            a(f"ds_write_b32 v{V_FA}, v{V_PUB}")
    a(f"""
    v_add_u32 v{V_U2}, 2, v{V_U2}
    s_add_u32 s{S_SLOT}, s{S_SLOT}, {SLOT}
    s_cmp_ge_u32 s{S_SLOT}, {R*SLOT}
    s_cselect_b32 s{S_SLOT}, 0, s{S_SLOT}
    s_add_u32 s{S_U}, s{S_U}, 1
    s_cmp_lt_u32 s{S_U}, s{S_NK}
    s_cbranch_scc1 L_ld_loop
    """)
    for r in range((W - 1) // 8, -1, -1):
        a(f"""
        v_add_u32 v{V_PUB}, {-r}, v{V_U2}
        s_waitcnt vmcnt({8*r})
        ds_write_b32 v{V_FA}, v{V_PUB}
        """)
    stamp(3)
    a("s_branch L_end")

    V_KB, V_VB, V_KA, V_VA, V_RA, V_CO = 2, 3, 4, 5, 6, 7
    V_MASK, V_M, V_L, V_TOK, V_ALPHA, V_S, V_T, V_O, V_A, V_Q, V_K, V_V = 8, 12, 13, 14, 15, 16, 20, 24, 32, 48, 80, 112
    V_CNT = 144
    NV = 146
    a.c("---------------- consumers ----------------")
    a(f"""
    L_cons:
    v_mov_b32 v{V_T}, 0
    v_mov_b32 v{V_T+1}, 0
    v_lshlrev_b32 v{V_T+2}, 2, v1
    v_lshlrev_b32 v{V_CO}, 3, v1
    ds_write_b32 v{V_T+2}, v{V_T} offset:{READY}
    ds_write_b64 v{V_CO}, v[{V_T}:{V_T+1}] offset:{CONS}
    """ if READY < 65536 else f"""
    L_cons:
    v_mov_b32 v{V_T}, 0
    v_mov_b32 v{V_T+1}, 0
    v_lshlrev_b32 v{V_T+2}, 2, v1
    v_add_u32 v{V_T+2}, {READY}, v{V_T+2}
    v_lshlrev_b32 v{V_CO}, 3, v1
    v_add_u32 v{V_CO}, {CONS}, v{V_CO}
    ds_write_b32 v{V_T+2}, v{V_T}
    ds_write_b64 v{V_CO}, v[{V_T}:{V_T+1}]
    """)
    assert READY >= 65536
    a(f"""
    s_sub_u32 s{S_W}, s{S_W}, 1
    v_and_b32 v{V_T+1}, 15, v0                  ; n / m
    v_bfe_u32 v{V_T+2}, v0, 4, 2                ; g
    s_waitcnt lgkmcnt(0)
    s_barrier
    s_load_dword s{S_CL}, s[12:13], 0
    ; Q: lane (g,n): (2h + (n&1))*512 + g*16
    v_and_b32 v{V_S}, 1, v0
    v_lshlrev_b32 v{V_S+1}, 9, v{V_S}
    v_lshl_add_u32 v{V_S+1}, v{V_T+2}, 4, v{V_S+1}
    s_lshl_b32 s{S_TMP}, s{S_H}, 10
    """)
    srd(S_Q, 4, 8192)
    for jj in range(8):
        a(f"buffer_load_dwordx4 {vr(V_Q+4*jj)}, v{V_S+1}, s[{S_Q}:{S_Q+3}], s{S_TMP} offen offset:{jj*64}")
    srd(S_WS, 18, 256 * WS_SLOT + 65536 * 16)
    srd(S_OUT, 14, 8192)
    srd(S_DBG, 16, 256)
    a(f"""
    s_mul_i32 s{S_WSO}, s2, {WS_SLOT}
    s_mov_b32 s{S_C}, {C_SCALE:#x}
    v_lshrrev_b32 v{V_KB}, 1, v{V_T+1}
    v_mul_u32_u24 v{V_KB}, {KPAD}, v{V_KB}
    v_lshl_add_u32 v{V_KB}, v{V_S}, 9, v{V_KB}
    v_xor_b32 v{V_S+2}, v{V_T+2}, v{V_S}
    v_lshl_add_u32 v{V_KB}, v{V_S+2}, 4, v{V_KB}
    v_lshlrev_b32 v{V_VB}, 11, v{V_T+2}
    v_lshl_add_u32 v{V_VB}, v{V_T+1}, 4, v{V_VB}
    v_add_u32 v{V_VB}, {KT}, v{V_VB}
    v_mov_b32 v{V_RA}, {READY}
    s_lshl_b32 s{S_TMP}, s{S_W}, 2
    v_add_u32 v{V_CO}, s{S_TMP}, v{V_CO}
    v_lshlrev_b32 v{V_TOK}, 2, v{V_T+2}         ; 4g
    v_bfe_u32 v{V_S+2}, v0, 1, 1
    v_lshlrev_b32 v{V_S+2}, 4, v{V_S+2}
    v_mov_b32 v{V_S+3}, 0xffff
    v_lshlrev_b32 v{V_S+3}, v{V_S+2}, v{V_S+3}
    v_bfe_u32 v{V_S+2}, v0, 2, 2
    """)
    for j in range(4):
        a(f"""
        v_cmp_eq_u32 vcc, {j}, v{V_S+2}
        s_nop 1
        v_cndmask_b32 v{V_MASK+j}, 0, v{V_S+3}, vcc
        """)
    a(f"""
    v_lshlrev_b32 v{V_T}, 4, v1                 ; lane*16
    s_cmp_lg_u32 s{S_W}, 0
    s_cbranch_scc1 L_noclear
    v_mov_b32 v{V_O}, -1
    v_mov_b32 v{V_O+1}, -1
    v_mov_b32 v{V_O+2}, -1
    v_mov_b32 v{V_O+3}, -1
    buffer_store_dwordx4 {vr(V_O)}, v{V_T}, s[{S_WS}:{S_WS+3}], s{S_WSO} offen sc1
    buffer_store_dwordx4 {vr(V_O)}, v{V_T}, s[{S_WS}:{S_WS+3}], s{S_WSO} offen offset:1024 sc1
    s_mov_b64 exec, 1
    buffer_store_dwordx4 {vr(V_O)}, v{V_T}, s[{S_WS}:{S_WS+3}], s{S_WSO} offen offset:2048 sc1
    v_mov_b32 v{V_S}, 1
    s_lshl_b32 s{S_TMP}, s{S_H}, 5
    s_waitcnt vmcnt(0)
    buffer_atomic_add v{V_S}, v{V_T}, s[{S_DBG}:{S_DBG+3}], s{S_TMP} offen
    s_mov_b64 exec, -1
    L_noclear:
    v_mov_b32 v{V_M}, {NEG_BIG:#x}
    v_mov_b32 v{V_L}, 0
    v_mov_b32 v{V_CNT}, 0
    v_mov_b32 v{V_CNT+1}, 0
    """)
    for r in range(8):
        a(f"v_mov_b32 v{V_O+r}, 0")
    a("s_waitcnt lgkmcnt(0)")
    calc_np_nk()
    a(f"""
    s_mov_b32 s{S_U}, s{S_W}
    s_mul_i32 s{S_SLOT}, s{S_W}, {SLOT}
    s_lshl_b32 s{S_TMP}, s{S_W}, 5
    s_add_u32 s{S_TMP}, s{S_TMP}, s{S_J}
    s_lshl_b32 s{S_TMP}, s{S_TMP}, 4
    s_sub_i32 s{S_REM}, s{S_CL}, s{S_TMP}
    s_mov_b32 s{S_RDY}, 0
    s_lshl_b32 s{S_T2}, s{S_H}, 5
    s_waitcnt vmcnt(0)
    s_cmp_ge_u32 s{S_U}, s{S_NK}
    s_cbranch_scc1 L_c_done
    L_c_loop:
    s_lshl_b32 s{S_NEED}, s{S_U}, 1
    v_add_u32 v{V_KA}, s{S_SLOT}, v{V_KB}
    v_add_u32 v{V_VA}, s{S_SLOT}, v{V_VB}
    s_add_u32 s{S_U}, s{S_U}, 2
    s_cmp_lt_u32 s{S_U}, s{S_NK}
    s_cbranch_scc1 L_c_pk
    buffer_load_dword v{V_CNT}, v{V_CNT+1}, s[{S_DBG}:{S_DBG+3}], s{S_T2} offen sc1
    L_c_pk:
    s_cmp_gt_i32 s{S_RDY}, s{S_NEED}
    s_cbranch_scc1 L_c_k
    ds_read_b32 v{V_T}, v{V_RA}
    s_waitcnt lgkmcnt(0)
    v_readfirstlane_b32 s{S_RDY}, v{V_T}
    s_branch L_c_pk
    L_c_k:
    """)
    for jj in range(8):
        a(f"ds_read_b128 {vr(V_K+4*jj)}, v{V_KA} offset:{jj*64}")
    a(f"s_add_u32 s{S_NEED}, s{S_NEED}, 1")
    for jj in range(8):
        a(f"s_waitcnt lgkmcnt({7-jj})")
        c = "0" if jj == 0 else vr(V_S)
        a(f"v_mfma_f32_16x16x32_bf16 {vr(V_S)}, {vr(V_K+4*jj)}, {vr(V_Q+4*jj)}, {c}")
    a(f"""
    s_add_u32 s{S_SLOT}, s{S_SLOT}, {2*SLOT}
    s_cmp_ge_u32 s{S_SLOT}, {R*SLOT}
    s_cselect_b32 s{S_TMP}, {R*SLOT}, 0
    s_sub_u32 s{S_SLOT}, s{S_SLOT}, s{S_TMP}
    s_nop 1
    s_cmp_ge_i32 s{S_REM}, 16
    s_cbranch_scc1 L_nomask
    v_mov_b32 v{V_T}, {MASKED_RAW:#x}
    v_sub_u32 v{V_T+1}, s{S_REM}, v{V_TOK}
    """)
    for r in range(4):
        a(f"""
        v_cmp_lt_i32 vcc, {r}, v{V_T+1}
        s_nop 1
        v_cndmask_b32 v{V_S+r}, v{V_T}, v{V_S+r}, vcc
        """)
    a(f"""
    L_nomask:
    v_max3_f32 v{V_T}, v{V_S}, v{V_S+1}, v{V_S+2}
    v_max_f32 v{V_T}, v{V_T}, v{V_S+3}
    v_mov_b32 v{V_T+1}, v{V_T}
    s_sub_i32 s{S_REM}, s{S_REM}, 1024
    s_nop 0
    v_permlane16_swap_b32 v{V_T}, v{V_T+1}
    v_max_f32 v{V_T}, v{V_T}, v{V_T+1}
    v_mov_b32 v{V_T+1}, v{V_T}
    s_nop 1
    v_permlane32_swap_b32 v{V_T}, v{V_T+1}
    v_max_f32 v{V_T}, v{V_T}, v{V_T+1}
    v_mul_f32 v{V_T}, s{S_C}, v{V_T}
    v_max_f32 v{V_T}, v{V_T}, v{V_M}
    v_sub_f32 v{V_ALPHA}, v{V_M}, v{V_T}
    v_mov_b32 v{V_M}, v{V_T}
    v_exp_f32 v{V_ALPHA}, v{V_ALPHA}
    """)
    for r in range(4):
        a(f"v_fma_f32 v{V_S+r}, v{V_S+r}, s{S_C}, -v{V_M}")
    for r in range(4):
        a(f"v_exp_f32 v{V_S+r}, v{V_S+r}")

    def qp(r):
        return "quad_perm:[0,0,2,2] row_mask:0xf bank_mask:0xf" if r % 2 == 0 else "quad_perm:[1,1,3,3] row_mask:0xf bank_mask:0xf"
    for r in range(8):
        a(f"v_mul_f32_dpp v{V_O+r}, v{V_ALPHA}, v{V_O+r} {qp(r)}")
    a(f"""
    v_add_f32 v{V_T}, v{V_S}, v{V_S+1}
    v_add_f32 v{V_T+1}, v{V_S+2}, v{V_S+3}
    v_add_f32 v{V_T}, v{V_T}, v{V_T+1}
    v_fma_f32 v{V_L}, v{V_L}, v{V_ALPHA}, v{V_T}
    """)
    for u in range(4):
        a(f"v_cvt_pk_bf16_f32 v{V_S+u}, v{V_S+u}, v{V_S+u}")
    for u in range(4):
        for j in range(4):
            a(f"v_and_b32 v{V_A+4*u+j}, v{V_S+u}, v{V_MASK+j}")
    a(f"""
    L_c_pv:
    s_cmp_gt_i32 s{S_RDY}, s{S_NEED}
    s_cbranch_scc1 L_c_v
    ds_read_b32 v{V_T}, v{V_RA}
    s_waitcnt lgkmcnt(0)
    v_readfirstlane_b32 s{S_RDY}, v{V_T}
    s_branch L_c_pv
    L_c_v:
    """)
    for u in range(4):
        for hf in range(2):
            a(f"ds_read_b128 {vr(V_V+8*u+4*hf)}, v{V_VA} offset:{u*512+hf*256}")
    a(f"v_add_u32 v{V_T}, -1, s{S_U}" if False else f"v_mov_b32 v{V_T}, s{S_U}")
    a(f"v_add_u32 v{V_T}, -1, v{V_T}")
    k = 0
    for u in range(4):
        for hf in range(2):
            a(f"s_waitcnt lgkmcnt({7-k})")
            if k == 7:
                a(f"ds_write_b32 v{V_CO}, v{V_T}")
            a(f"v_mfma_f32_16x16x32_bf16 {vr(V_O+4*hf)}, {vr(V_A+4*u)}, {vr(V_V+8*u+4*hf)}, {vr(V_O+4*hf)}")
            k += 1
    a(f"""
    s_cmp_lt_u32 s{S_U}, s{S_NK}
    s_cbranch_scc1 L_c_loop
    L_c_done:
    """)
    stamp(3)
    a(f"""
    v_mov_b32 v{V_T+1}, v{V_L}
    v_lshlrev_b32 v{V_T}, 4, v1                 ; lane*16
    v_lshlrev_b32 v{V_T+2}, 3, v1               ; lane*8
    v_permlane16_swap_b32 v{V_L}, v{V_T+1}
    v_add_f32 v{V_L}, v{V_L}, v{V_T+1}
    v_mov_b32 v{V_T+1}, v{V_L}
    v_add_u32 v{V_KA}, {MERGE}, v{V_T}
    v_add_u32 v{V_VA}, {MERGE+2048}, v{V_T+2}
    v_permlane32_swap_b32 v{V_L}, v{V_T+1}
    v_add_f32 v{V_L}, v{V_L}, v{V_T+1}
    s_add_u32 s{S_TMP}, s{S_NK}, 1
    s_and_b32 s{S_TMP}, s{S_TMP}, 1
    s_cmp_eq_u32 s{S_TMP}, s{S_W}
    s_cbranch_scc1 L_fin
    ds_write_b128 v{V_KA}, {vr(V_O)}
    ds_write_b128 v{V_KA}, {vr(V_O+4)} offset:1024
    ds_write_b64 v{V_VA}, v[{V_M}:{V_L}]
    s_waitcnt lgkmcnt(0)
    s_barrier
    s_branch L_end
    L_fin:
    s_barrier
    ds_read_b64 v[{V_A}:{V_A+1}], v{V_VA}
    ds_read_b128 {vr(V_K)}, v{V_KA}
    ds_read_b128 {vr(V_K+4)}, v{V_KA} offset:1024
    v_and_b32 v{V_T+2}, 1, v1
    v_lshlrev_b32 v{V_T+2}, 3, v{V_T+2}         ; q*8
    s_waitcnt lgkmcnt(2)
    v_max_f32 v{V_T+1}, v{V_M}, v{V_A}
    v_sub_f32 v{V_ALPHA}, v{V_M}, v{V_T+1}
    v_sub_f32 v{V_A}, v{V_A}, v{V_T+1}
    v_exp_f32 v{V_ALPHA}, v{V_ALPHA}
    v_exp_f32 v{V_A}, v{V_A}
    v_min_u32 v{V_M}, -2, v{V_T+1}
    v_mul_f32 v{V_L}, v{V_L}, v{V_ALPHA}
    v_fmac_f32 v{V_L}, v{V_A}, v{V_A+1}
    """)
    for r in range(8):
        a(f"v_mul_f32_dpp v{V_O+r}, v{V_ALPHA}, v{V_O+r} {qp(r)}")
    a("s_waitcnt lgkmcnt(0)")
    for r in range(8):
        a(f"v_fmac_f32_dpp v{V_O+r}, v{V_A}, v{V_K+r} {qp(r)}")
    a(f"v_min_u32 v{V_L}, -2, v{V_L}")
    for r in range(8):
        a(f"v_min_u32 v{V_O+r}, -2, v{V_O+r}")
    a(f"""
    buffer_store_dwordx4 {vr(V_O)}, v{V_T}, s[{S_WS}:{S_WS+3}], s{S_WSO} offen sc1
    buffer_store_dwordx4 {vr(V_O+4)}, v{V_T}, s[{S_WS}:{S_WS+3}], s{S_WSO} offen offset:1024 sc1
    s_mov_b64 exec, 3
    buffer_store_dwordx2 v[{V_M}:{V_L}], v{V_T+2}, s[{S_WS}:{S_WS+3}], s{S_WSO} offen offset:2048 sc1
    s_mov_b64 exec, -1
    """)
    stamp(4)
    a(f"""
    v_lshrrev_b32 v{V_KA}, 1, v1
    v_mul_u32_u24 v{V_KA}, {WS_SLOT}, v{V_KA}
    v_lshl_add_u32 v{V_VA}, v{V_T+2}, 2, v{V_KA} ; + 32*(l&1)
    s_lshl_b32 s{S_TMP}, s{S_J}, 6
    v_add_u32 v{V_VA}, s{S_TMP}, v{V_VA}
    s_mul_i32 s{S_OFF}, s{S_H}, {32*WS_SLOT}
    s_mov_b32 s{S_NEED}, 0x40000
    s_waitcnt vmcnt(3)
    L_cnt:
    v_readfirstlane_b32 s{S_TMP}, v{V_CNT}
    s_cmp_ge_u32 s{S_TMP}, 32
    s_cbranch_scc1 L_poll
    buffer_load_dword v{V_CNT}, v{V_CNT+1}, s[{S_DBG}:{S_DBG+3}], s{S_T2} offen sc1
    s_sub_u32 s{S_NEED}, s{S_NEED}, 1
    s_waitcnt vmcnt(0)
    s_cbranch_scc0 L_cnt
    L_poll:
    buffer_load_dwordx4 {vr(V_A)}, v{V_KA}, s[{S_WS}:{S_WS+3}], s{S_OFF} offen offset:2048 sc1
    buffer_load_dwordx4 {vr(V_K)}, v{V_VA}, s[{S_WS}:{S_WS+3}], s{S_OFF} offen sc1
    buffer_load_dwordx4 {vr(V_K+4)}, v{V_VA}, s[{S_WS}:{S_WS+3}], s{S_OFF} offen offset:16 sc1
    s_waitcnt vmcnt(2)
    v_max3_u32 v{V_T}, v{V_A}, v{V_A+1}, v{V_A+2}
    s_waitcnt vmcnt(1)
    v_max3_u32 v{V_T}, v{V_T}, v{V_A+3}, v{V_K}
    v_max3_u32 v{V_T}, v{V_T}, v{V_K+1}, v{V_K+2}
    s_waitcnt vmcnt(0)
    v_max3_u32 v{V_T}, v{V_T}, v{V_K+3}, v{V_K+4}
    v_max3_u32 v{V_T}, v{V_T}, v{V_K+5}, v{V_K+6}
    v_max_u32 v{V_T}, v{V_T}, v{V_K+7}
    v_cmp_eq_u32 vcc, -1, v{V_T}
    s_sub_i32 s{S_NEED}, s{S_NEED}, 1
    s_cmp_lt_i32 s{S_NEED}, 0
    s_cselect_b64 exec, 0, vcc
    s_cbranch_execnz L_poll
    s_mov_b64 exec, -1
    """)
    stamp(5)
    M0, L0, M1, L1 = V_A, V_A + 1, V_A + 2, V_A + 3
    X0, X1, T0, T1 = V_A + 4, V_A + 5, V_A + 6, V_A + 7

    def dpp(op, d, s0, s1, ctl):
        a(f"{op}_dpp v{d}, v{s0}, v{s1} {ctl} row_mask:0xf bank_mask:0xf")
    a("s_nop 0")
    dpp("v_max_f32", X0, M0, M0, "row_ror:2")
    dpp("v_max_f32", X1, M1, M1, "row_ror:2")
    for rot in (4, 8):
        a("s_nop 0")
        dpp("v_max_f32", X0, X0, X0, f"row_ror:{rot}")
        dpp("v_max_f32", X1, X1, X1, f"row_ror:{rot}")
    for sw in ("v_permlane16_swap_b32", "v_permlane32_swap_b32"):
        a(f"""
        v_mov_b32 v{T0}, v{X0}
        v_mov_b32 v{T1}, v{X1}
        s_nop 0
        {sw} v{X0}, v{T0}
        {sw} v{X1}, v{T1}
        v_max_f32 v{X0}, v{X0}, v{T0}
        v_max_f32 v{X1}, v{X1}, v{T1}
        """)
    a(f"""
    v_sub_f32 v{M0}, v{M0}, v{X0}
    v_sub_f32 v{M1}, v{M1}, v{X1}
    v_exp_f32 v{M0}, v{M0}
    v_exp_f32 v{M1}, v{M1}
    v_bfe_u32 v{T0}, v1, 4, 1
    v_mul_f32 v{L0}, v{L0}, v{M0}
    v_mul_f32 v{L1}, v{L1}, v{M1}
    """)
    for r in range(8):
        a(f"v_mul_f32 v{V_K+r}, v{V_K+r}, v{(M0, M1)[r & 1]}")
    a(f"""
    v_lshlrev_b32 v{T0}, 9, v{T0}
    v_permlane16_swap_b32 v{L0}, v{L1}
    v_permlane16_swap_b32 v{V_K}, v{V_K+1}
    v_permlane16_swap_b32 v{V_K+2}, v{V_K+3}
    v_permlane16_swap_b32 v{V_K+4}, v{V_K+5}
    v_permlane16_swap_b32 v{V_K+6}, v{V_K+7}
    v_add_f32 v{L0}, v{L0}, v{L1}
    v_add_f32 v{V_K}, v{V_K}, v{V_K+1}
    v_add_f32 v{V_K+2}, v{V_K+2}, v{V_K+3}
    v_add_f32 v{V_K+4}, v{V_K+4}, v{V_K+5}
    v_add_f32 v{V_K+6}, v{V_K+6}, v{V_K+7}
    v_mov_b32 v{L1}, v{L0}
    v_lshrrev_b32 v{T1}, 5, v1                  ; sel
    v_permlane32_swap_b32 v{V_K}, v{V_K+4}
    v_permlane32_swap_b32 v{V_K+2}, v{V_K+6}
    v_permlane32_swap_b32 v{L0}, v{L1}
    v_add_f32 v{V_K}, v{V_K}, v{V_K+4}
    v_add_f32 v{V_K+2}, v{V_K+2}, v{V_K+6}
    v_add_f32 v{L0}, v{L0}, v{L1}
    """)
    for rot in (2, 4, 8):
        dpp("v_add_f32", V_K, V_K, V_K, f"row_ror:{rot}")
        dpp("v_add_f32", V_K + 2, V_K + 2, V_K + 2, f"row_ror:{rot}")
        dpp("v_add_f32", L0, L0, L0, f"row_ror:{rot}")
    a(f"""
    v_lshl_add_u32 v{T0}, v{T1}, 4, v{T0}       ; + sel*16
    v_lshl_add_u32 v{T0}, v{V_T+2}, 2, v{T0}    ; + parity*32
    v_rcp_f32 v{L1}, v{L0}
    s_and_b32 s{S_TMP}, s{S_J}, 3
    s_lshl_b32 s{S_TMP}, s{S_TMP}, 6            ; 4*(j&3)*16
    s_bfe_u32 s{S_T2}, s{S_J}, 0x20002
    s_lshl_b32 s{S_T2}, s{S_T2}, 2              ; g'*4
    s_add_u32 s{S_TMP}, s{S_TMP}, s{S_T2}
    v_fma_f32 v{X0}, -v{L0}, v{L1}, 1.0
    v_fma_f32 v{L1}, v{X0}, v{L1}, v{L1}
    s_lshr_b32 s{S_T2}, s{S_J}, 4
    s_lshl_b32 s{S_T2}, s{S_T2}, 8              ; hf*256
    s_add_u32 s{S_TMP}, s{S_TMP}, s{S_T2}
    s_lshl_b32 s{S_T2}, s{S_H}, 10
    s_add_u32 s{S_TMP}, s{S_TMP}, s{S_T2}
    v_mul_f32 v{V_K}, v{V_K}, v{L1}
    v_mul_f32 v{V_K+2}, v{V_K+2}, v{L1}
    v_cvt_pk_bf16_f32 v{V_K}, v{V_K}, v{V_K+2}
    s_mov_b32 exec_lo, 0x00030003
    s_mov_b32 exec_hi, 0x00030003
    buffer_store_dword v{V_K}, v{T0}, s[{S_OUT}:{S_OUT+3}], s{S_TMP} offen
    """)
    stamp(7)
    a("L_end:")
    if o.stamps:
        a(f"""
        s_waitcnt lgkmcnt(0) vmcnt(0)
        s_mov_b64 exec, -1
        v_lshrrev_b32 v4, 6, v0
        s_nop 0
        v_readfirstlane_b32 s{S_W}, v4
        """)
        srd(S_WS, 18, 256 * WS_SLOT + 65536 * 16)
        a(f"""
        s_getreg_b32 s{ST0+16}, hwreg(HW_REG_XCC_ID)
        s_getreg_b32 s{ST0+17}, hwreg(HW_REG_HW_ID)
        s_mul_i32 s{S_TMP}, s2, 3
        s_add_u32 s{S_TMP}, s{S_TMP}, s{S_W}
        s_lshl_b32 s{S_TMP}, s{S_TMP}, 7
        s_add_u32 s{S_TMP}, s{S_TMP}, {256*WS_SLOT}
        s_mov_b64 exec, 1
        v_mov_b32 v4, 0
        """)
        for i in range(18):
            a(f"v_mov_b32 v5, s{ST0+i}")
            a(f"buffer_store_dword v5, v4, s[{S_WS}:{S_WS+3}], s{S_TMP} offen offset:{4*i}")
            a("s_nop 1")
    a("L_exit:")
    a("s_endpgm")

    out = HEADER + f"; @launch grid=(256,1,1) block=(192,1,1) lds={LDS_BYTES}\n"
    out += f""".amdgcn_target "amdgcn-amd-amdhsa--gfx950"
.text
.globl {NAME}_kernel
.p2align 8
.type {NAME}_kernel,@function
"""
    out += a.text()
    acc = (NV + 3) // 4 * 4
    out += f""".section .rodata,"a"
.p2align 6
.amdhsa_kernel {NAME}_kernel
  .amdhsa_next_free_vgpr {NV}
  .amdhsa_next_free_sgpr 96
  .amdhsa_accum_offset {acc}
  .amdhsa_group_segment_fixed_size 0
  .amdhsa_kernarg_size 64
  .amdhsa_user_sgpr_count 2
  .amdhsa_user_sgpr_kernarg_segment_ptr 1
  .amdhsa_system_sgpr_workgroup_id_x 1
.end_amdhsa_kernel
"""
    return out


if __name__ == "__main__":
    p = argparse.ArgumentParser()
    p.add_argument("-o", default="cdna_kernels/" + NAME + ".s")
    p.add_argument("--w", type=int, default=20)
    p.add_argument("--ring", type=int, default=8)
    p.add_argument("--pol", default="nt")
    p.add_argument("--stamps", action="store_true")
    o = p.parse_args()
    open(o.o, "w").write(gen(o))
```

```python
import argparse
from gen import A, vr, HEADER, NAME, KV_BYTES, C_SCALE, NEG_BIG, MASKED_RAW

WS_SLOT = 2176
TICK_OFF = 0x200000
WS_BYTES = TICK_OFF + 64 * 4096
KPAD = 1056
KT = 8 * KPAD
SLOT = KT + 8192
RDY, CONS, QENT, DT, MERGE, RB = 0, 1024, 1536, 1792, 3328, 5888
BIG = 0x7fffffff


def gen(o):
    W, R, D, LA = o.w, o.ring, o.dyn, o.la
    assert (D + 1) * 32 <= 384
    pol = (" " + o.pol) if o.pol else ""
    a = A()
    LDS_BYTES = RB + R * SLOT
    S_K, S_V, S_Q, S_WS, S_OUT, S_DBG, S_BT = 20, 24, 28, 32, 36, 40, 44
    (S_CL, S_NP, S_S, S_U, S_REM, S_OFF, S_W, S_H, S_J, S_C, S_TMP, S_T2, S_SLOT, S_RDY, S_NEED,
     S_WSO) = range(48, 64)
    ST0 = 64
    S_NKF, S_MASKU, S_REML, S_REMD, S_BARU, S_E, S_ND, S_TK, S_P0, S_P1, S_G = range(82, 93)
    LP = o.lp

    def srd(base, ptr, nbytes):
        a(f"""
        s_mov_b32 s{base}, s{ptr}
        s_and_b32 s{base+1}, s{ptr+1}, 0xffff
        s_mov_b32 s{base+2}, {nbytes:#x}
        s_mov_b32 s{base+3}, 0x20000
        """)

    def stamp(i):
        if o.stamps:
            a(f"s_memrealtime s[{ST0+2*i}:{ST0+1+2*i}]")

    def calc_np():
        a(f"""
        s_min_i32 s{S_TMP}, s{S_CL}, 0x10000
        s_add_i32 s{S_NP}, s{S_TMP}, 15
        s_lshr_b32 s{S_NP}, s{S_NP}, 4
        s_cmp_lt_i32 s{S_CL}, 1
        s_cselect_b32 s{S_NP}, 0x1000, s{S_NP}
        s_cselect_b32 s{S_CL}, 0, s{S_TMP}
        """)

    def calc_s():
        a(f"""
        s_lshr_b32 s{S_S}, s{S_NP}, 5
        s_sub_i32 s{S_S}, s{S_S}, {D}
        s_max_i32 s{S_S}, s{S_S}, 0
        """)

    a(f"{NAME}_kernel:")
    if o.stamps:
        for i in range(18):
            a(f"s_mov_b32 s{ST0+i}, 0")
    a(f"""
    s_cmp_ge_u32 s2, 256
    s_cbranch_scc1 L_exit
    s_load_dwordx16 s[4:19], s[0:1], 0
    """)
    stamp(0)
    a(f"""
    v_lshrrev_b32 v4, 6, v0
    v_and_b32 v1, 63, v0
    v_readfirstlane_b32 s{S_W}, v4
    s_lshr_b32 s{S_H}, s2, 5
    s_and_b32 s{S_J}, s2, 31
    s_cmp_lg_u32 s{S_W}, 0
    s_cbranch_scc1 L_other
    """)
    V_BT, V_BT2, V_OK, V_OV, V_CW, V_FA, V_QI, V_QE, V_U2, V_Z = 2, 3, 8, 16, 24, 26, 27, 28, 29, 30
    V_PUB = 32
    a.c("---------------- loader ----------------")
    a(f"""
    v_lshlrev_b32 v6, 7, v1
    s_lshl_b32 s{S_T2}, s{S_J}, 2
    v_add_u32 v6, s{S_T2}, v6
    s_lshl_b32 s{S_TMP}, s{S_H}, 9
    v_lshrrev_b32 v4, 5, v1
    v_and_b32 v5, 31, v1
    v_lshl_add_u32 v{V_OV}, v5, 4, s{S_TMP}
    v_lshl_add_u32 v{V_OV}, v4, 12, v{V_OV}     ; V: par*4096 + h*512 + c*16
    v_xor_b32 v5, v5, v4
    v_lshl_add_u32 v{V_OK}, v5, 4, s{S_TMP}
    v_lshl_add_u32 v{V_OK}, v4, 12, v{V_OK}
    v_add_u32 v7, 0x2000, v6
    """)
    for i in range(1, 8):
        a(f"v_add_u32 v{V_OK+i}, {i*8192 - (i & 3)*KPAD}, v{V_OK}")
        a(f"v_add_u32 v{V_OV+i}, {i*8192 - (i & 3)*1024}, v{V_OV}")
    a(f"""
    s_mov_b32 s{S_BT+2}, 16384
    s_mov_b32 s{S_BT+3}, 0x20000
    s_mov_b32 s{S_K+2}, {KV_BYTES:#x}
    s_mov_b32 s{S_K+3}, 0x20000
    s_mov_b32 s{S_V+2}, {KV_BYTES:#x}
    s_mov_b32 s{S_V+3}, 0x20000
    s_waitcnt lgkmcnt(0)
    s_load_dword s{S_CL}, s[12:13], 0
    s_load_dword s{S_P0}, s[10:11], s{S_T2}
    s_load_dword s{S_P1}, s[10:11], s{S_T2} offset:128
    s_mov_b32 s{S_BT}, s10
    s_and_b32 s{S_BT+1}, s11, 0xffff
    buffer_load_dword v{V_BT}, v6, s[{S_BT}:{S_BT+3}], 0 offen
    buffer_load_dword v{V_BT2}, v7, s[{S_BT}:{S_BT+3}], 0 offen
    s_mov_b32 s{S_K}, s6
    s_and_b32 s{S_K+1}, s7, 0xffff
    s_mov_b32 s{S_V}, s8
    s_and_b32 s{S_V+1}, s9, 0xffff
    v_lshlrev_b32 v{V_FA}, 4, v1
    v_mov_b32 v{V_Z}, 0
    v_mov_b32 v{V_QI}, 0
    v_mov_b32 v{V_U2}, 0
    v_mov_b32 v{V_CW}, 0
    v_mov_b32 v{V_CW+1}, 0
    v_mov_b32 v{V_PUB}, 0
    v_mov_b32 v{V_PUB+1}, {BIG:#x}
    v_mov_b32 v{V_PUB+2}, -1
    v_mov_b32 v{V_PUB+3}, 0
    s_mov_b32 s{S_U}, 0
    s_mov_b32 s{S_SLOT}, {RB}
    s_waitcnt lgkmcnt(0)
    ds_write_b128 v{V_FA}, {vr(V_PUB)} offset:{RDY}
    """)
    calc_np()
    calc_s()
    a(f"s_min_u32 s{S_BARU}, s{S_S}, 1")
    stamp(1)
    a(f"""
    L_ld_loop:
    s_cmp_lg_u32 s{S_U}, s{S_BARU}
    s_cbranch_scc1 L_ld_nobar
    s_waitcnt lgkmcnt(0)
    s_barrier
    ds_read_b64 v[{V_CW}:{V_CW+1}], v{V_Z} offset:{CONS}
    ds_read_b32 v{V_QE}, v{V_QI} offset:{QENT}
    L_ld_nobar:
    s_cmp_ge_u32 s{S_U}, s{S_S}
    s_cbranch_scc1 L_ld_dyn
    v_readlane_b32 s{S_OFF}, v{V_BT}, s{S_U}
    v_readlane_b32 s{S_T2}, v{V_BT2}, s{S_U}
    s_cmp_ge_u32 s{S_U}, 64
    s_cselect_b32 s{S_OFF}, s{S_T2}, s{S_OFF}
    s_cmp_lt_u32 s{S_U}, 2
    s_cselect_b32 s{S_OFF}, s{S_P0}, s{S_OFF}
    s_mov_b32 s{S_P0}, s{S_P1}
    s_lshl_b32 s{S_OFF}, s{S_OFF}, 16
    L_ld_chk:
    s_waitcnt lgkmcnt(0)
    v_readfirstlane_b32 s{S_TMP}, v{V_CW}
    v_readfirstlane_b32 s{S_RDY}, v{V_CW+1}
    s_bitcmp1_b32 s{S_U}, 0
    s_cselect_b32 s{S_TMP}, s{S_RDY}, s{S_TMP}
    s_add_u32 s{S_TMP}, s{S_TMP}, {R-1}
    s_cmp_ge_u32 s{S_TMP}, s{S_U}
    s_cbranch_scc0 L_ld_rechk
    v_add_u32 v{V_QI}, 4, v{V_QI}
    v_and_b32 v{V_QI}, 63, v{V_QI}
    """)
    for idx in range(16):
        which, i = idx >> 3, idx & 7
        if i % 4 == 0:
            base = (i // 4) * 4 * KPAD if which == 0 else KT + i * 1024
            a(f"s_add_u32 m0, s{S_SLOT}, {base}")
        a(f"s_waitcnt vmcnt({W-1})")
        srdn = (S_K, S_V)[which]
        voff = (V_OK, V_OV)[which] + i
        step = (KPAD, 1024)[which]
        a(f"buffer_load_dwordx4 v{voff}, s[{srdn}:{srdn+3}], s{S_OFF} offen offset:{(i & 3)*step}{pol} lds")
        if (idx + 1 - W) % 8 == 0:
            a(f"v_add_u32 v{V_PUB}, {(idx + 1 - W)//8}, v{V_U2}")
            a(f"ds_write_b128 v{V_FA}, {vr(V_PUB)} offset:{RDY}")
        if idx == o.pf:
            a(f"ds_read_b64 v[{V_CW}:{V_CW+1}], v{V_Z} offset:{CONS}")
            a(f"ds_read_b32 v{V_QE}, v{V_QI} offset:{QENT}")
    a(f"""
    v_add_u32 v{V_U2}, 2, v{V_U2}
    s_add_u32 s{S_SLOT}, s{S_SLOT}, {SLOT}
    s_cmp_ge_u32 s{S_SLOT}, {RB+R*SLOT}
    s_cselect_b32 s{S_SLOT}, {RB}, s{S_SLOT}
    s_add_u32 s{S_U}, s{S_U}, 1
    s_branch L_ld_loop
    L_ld_rechk:
    ds_read_b64 v[{V_CW}:{V_CW+1}], v{V_Z} offset:{CONS}
    s_branch L_ld_chk
    L_ld_requ:
    {"s_add_u32 s%d, s%d, 1" % (ST0+13, ST0+13) if o.stamps else ""}
    ds_read_b32 v{V_QE}, v{V_QI} offset:{QENT}
    L_ld_dyn:
    s_add_u32 s{S_T2}, s{S_U}, 1
    s_waitcnt lgkmcnt(0)
    v_readfirstlane_b32 s{S_E}, v{V_QE}
    s_and_b32 s{S_TMP}, s{S_E}, 0x3fff
    s_cmp_lg_u32 s{S_TMP}, s{S_T2}
    s_cbranch_scc1 L_ld_requ
    s_and_b32 s{S_OFF}, s{S_E}, 0xffff0000
    s_bitcmp0_b32 s{S_E}, 15
    s_cbranch_scc1 L_ld_nolast
    v_mov_b32 v{V_PUB+2}, s{S_U}
    L_ld_nolast:
    s_bitcmp0_b32 s{S_E}, 14
    s_cbranch_scc1 L_ld_chk
    v_mov_b32 v{V_PUB+1}, s{S_U}
    """)
    for r in range((W - 1) // 8, -1, -1):
        a(f"""
        v_add_u32 v{V_PUB}, {-r}, v{V_U2}
        s_waitcnt vmcnt({8*r})
        ds_write_b128 v{V_FA}, {vr(V_PUB)} offset:{RDY}
        """)
    stamp(3)
    if o.stamps:
        a(f"s_mov_b32 s{ST0+12}, s{S_U}")
    a("s_branch L_end")

    a(f"""
    L_other:
    s_cmp_lg_u32 s{S_W}, 3
    s_cbranch_scc1 L_cons
    """)
    a.c("---------------- scheduler ----------------")
    a(f"""
    v_mov_b32 v4, 0
    v_mov_b32 v5, 0
    v_lshlrev_b32 v2, 2, v1
    v_lshlrev_b32 v3, 3, v1
    ds_write_b64 v3, v[4:5] offset:{CONS}
    ds_write_b32 v2, v4 offset:{QENT}
    v_lshlrev_b32 v3, 4, v1
    v_mov_b32 v8, -1
    v_mov_b32 v9, -1
    v_mov_b32 v10, -1
    v_mov_b32 v11, -1
    s_mul_i32 s{S_WSO}, s2, {WS_SLOT}
    s_lshr_b32 s{S_TK}, s2, {5-LP}
    s_mul_i32 s{S_TK}, s{S_TK}, {o.tstride}
    s_add_u32 s{S_TK}, s{S_TK}, {TICK_OFF}
    s_lshr_b32 s{S_G}, s{S_J}, {5-LP}
    s_lshl_b32 s{S_T2}, s{S_H}, 5
    s_waitcnt lgkmcnt(0)
    s_load_dword s{S_CL}, s[12:13], 0
    """)
    srd(S_WS, 18, WS_BYTES)
    a(f"""
    buffer_store_dwordx4 v[8:11], v3, s[{S_WS}:{S_WS+3}], s{S_WSO} offen sc1
    buffer_store_dwordx4 v[8:11], v3, s[{S_WS}:{S_WS+3}], s{S_WSO} offen offset:1024 sc1
    s_mov_b64 exec, 1
    buffer_store_dwordx4 v[8:11], v3, s[{S_WS}:{S_WS+3}], s{S_WSO} offen offset:2048 sc1
    s_and_b32 s{S_TMP}, s{S_J}, {(32 >> LP) - 1}
    s_cbranch_scc1 L_s_nozero
    buffer_store_dword v4, v4, s[{S_WS}:{S_WS+3}], s{S_TK} offen sc1
    L_s_nozero:
    s_mov_b64 exec, -1
    s_barrier
    """)
    srd(S_DBG, 16, 256)
    srd(S_BT, 10, 16384)
    a("s_waitcnt lgkmcnt(0)")
    calc_np()
    calc_s()
    a(f"""
    s_lshl_b32 s{S_TMP}, s{S_S}, 5
    s_sub_u32 s{S_ND}, s{S_NP}, s{S_TMP}
    s_lshl_b32 s{S_TMP}, s{S_TMP}, 2
    """)
    for i in range(6):
        a(f"buffer_load_dword v{12+i}, v2, s[{S_BT}:{S_BT+3}], s{S_TMP} offen offset:{256*i}")
    a(f"""
    v_mov_b32 v6, 1
    s_waitcnt vmcnt(0)
    s_mov_b64 exec, 1
    buffer_atomic_add v6, v4, s[{S_DBG}:{S_DBG+3}], s{S_T2} offen
    s_mov_b64 exec, -1
    """)
    for i in range(6):
        a(f"ds_write_b32 v2, v{12+i} offset:{DT+256*i}")
    a(f"""
    s_mov_b64 exec, 1
    s_mov_b32 s{S_U}, s{S_S}
    s_lshl_b32 s{S_NEED}, s{S_U}, 1
    s_sub_i32 s{S_NEED}, s{S_NEED}, {LA}
    s_sub_i32 s{S_T2}, s{S_NEED}, 8
    L_s_far:
    ds_read_b32 v7, v4 offset:{RDY}
    s_waitcnt lgkmcnt(0)
    v_readfirstlane_b32 s{S_RDY}, v7
    s_cmp_ge_i32 s{S_RDY}, s{S_T2}
    s_cbranch_scc1 L_s_near
    s_sleep 8
    s_branch L_s_far
    L_s_near:
    s_lshl_b32 s{S_T2}, s{S_H}, 5
    s_mov_b32 s{S_OFF}, 0x40000
    L_s_cnt:
    buffer_load_dword v7, v4, s[{S_DBG}:{S_DBG+3}], s{S_T2} offen sc1
    s_waitcnt vmcnt(0)
    v_readfirstlane_b32 s{S_TMP}, v7
    s_sub_u32 s{S_OFF}, s{S_OFF}, 1
    s_cbranch_scc1 L_s_go
    s_cmp_lt_u32 s{S_TMP}, 32
    s_cbranch_scc1 L_s_cnt
    L_s_go:
    """)

    def wait_ready(lbl):
        a(f"""
        {lbl}:
        s_cmp_ge_i32 s{S_RDY}, s{S_NEED}
        s_cbranch_scc1 {lbl}_ok
        ds_read_b32 v7, v4 offset:{RDY}
        s_waitcnt lgkmcnt(0)
        v_readfirstlane_b32 s{S_RDY}, v7
        s_branch {lbl}
        {lbl}_ok:
        s_add_i32 s{S_NEED}, s{S_NEED}, 2
        """)

    def request(v):
        a(f"""
        v_mov_b32 v{v}, 1
        buffer_atomic_add v{v}, v4, s[{S_WS}:{S_WS+3}], s{S_TK} offen sc0
        """)

    def emit(v):
        a(f"""
        s_lshl_b32 s{S_T2}, s{S_TMP}, 2
        v_mov_b32 v12, s{S_T2}
        ds_read_b32 v13, v12 offset:{DT}
        s_add_u32 s{S_TMP}, s{S_TMP}, 1
        s_cmp_eq_u32 s{S_TMP}, s{S_ND}
        s_cselect_b32 s{S_TMP}, 0x8000, 0
        s_and_b32 s{S_T2}, s{S_U}, 15
        s_lshl_b32 s{S_T2}, s{S_T2}, 2
        s_add_u32 s{S_U}, s{S_U}, 1
        s_or_b32 s{S_TMP}, s{S_TMP}, s{S_U}
        v_mov_b32 v12, s{S_T2}
        s_waitcnt lgkmcnt(0)
        v_lshl_or_b32 v13, v13, 16, s{S_TMP}
        ds_write_b32 v12, v13 offset:{QENT}
        """)

    wait_ready("L_s_w0")
    request(20)
    a("L_s_loop:")
    for ph in range(2):
        cur, nxt = (20, 21) if ph == 0 else (21, 20)
        wait_ready(f"L_s_w{ph+1}")
        request(nxt)
        a(f"""
        s_waitcnt vmcnt(1)
        v_readfirstlane_b32 s{S_TMP}, v{cur}
        s_min_u32 s{S_TMP}, s{S_TMP}, 0x10000
        s_lshl_b32 s{S_TMP}, s{S_TMP}, {LP}
        s_add_u32 s{S_TMP}, s{S_TMP}, s{S_G}
        s_cmp_ge_u32 s{S_TMP}, s{S_ND}
        s_cbranch_scc1 L_s_end{ph}
        """)
        emit(cur)
    a("s_branch L_s_loop")
    a(f"""
    L_s_end0:
    s_waitcnt vmcnt(0)
    v_mov_b32 v20, v21
    L_s_end1:
    s_waitcnt vmcnt(0)
    v_readfirstlane_b32 s{S_TMP}, v20
    s_min_u32 s{S_TMP}, s{S_TMP}, 0x10000
    s_lshl_b32 s{S_TMP}, s{S_TMP}, {LP}
    s_add_u32 s{S_TMP}, s{S_TMP}, s{S_G}
    s_cmp_ge_u32 s{S_TMP}, s{S_ND}
    s_cbranch_scc1 L_s_fin
    """)
    emit(20)
    a(f"""
    L_s_fin:
    s_and_b32 s{S_T2}, s{S_U}, 15
    s_lshl_b32 s{S_T2}, s{S_T2}, 2
    s_add_u32 s{S_U}, s{S_U}, 1
    s_or_b32 s{S_TMP}, s{S_U}, 0x4000
    v_mov_b32 v12, s{S_T2}
    v_mov_b32 v13, s{S_TMP}
    ds_write_b32 v12, v13 offset:{QENT}
    s_branch L_end
    """)

    V_KB, V_VB, V_KA, V_VA, V_RA, V_CO = 2, 3, 4, 5, 6, 7
    V_MASK, V_M, V_L, V_TOK, V_ALPHA, V_S, V_T, V_O, V_A, V_Q, V_K, V_V = 8, 12, 13, 14, 15, 16, 20, 24, 32, 48, 80, 112
    NV = 144
    a.c("---------------- consumers ----------------")
    a(f"""
    L_cons:
    s_sub_u32 s{S_W}, s{S_W}, 1
    v_and_b32 v{V_T+1}, 15, v0                  ; n / m
    v_bfe_u32 v{V_T+2}, v0, 4, 2                ; g
    ; Q: lane (g,n): (2h + (n&1))*512 + g*16
    v_and_b32 v{V_S}, 1, v0
    v_lshlrev_b32 v{V_S+1}, 9, v{V_S}
    v_lshl_add_u32 v{V_S+1}, v{V_T+2}, 4, v{V_S+1}
    s_lshl_b32 s{S_TMP}, s{S_H}, 10
    s_waitcnt lgkmcnt(0)
    s_load_dword s{S_CL}, s[12:13], 0
    """)
    srd(S_Q, 4, 8192)
    for jj in range(8):
        a(f"buffer_load_dwordx4 {vr(V_Q+4*jj)}, v{V_S+1}, s[{S_Q}:{S_Q+3}], s{S_TMP} offen offset:{jj*64}")
    srd(S_WS, 18, WS_BYTES)
    srd(S_OUT, 14, 8192)
    a(f"""
    s_mul_i32 s{S_WSO}, s2, {WS_SLOT}
    s_mov_b32 s{S_C}, {C_SCALE:#x}
    v_lshrrev_b32 v{V_KB}, 1, v{V_T+1}
    v_mul_u32_u24 v{V_KB}, {KPAD}, v{V_KB}
    v_lshl_add_u32 v{V_KB}, v{V_S}, 9, v{V_KB}
    v_xor_b32 v{V_S+2}, v{V_T+2}, v{V_S}
    v_lshl_add_u32 v{V_KB}, v{V_S+2}, 4, v{V_KB}
    v_lshlrev_b32 v{V_VB}, 11, v{V_T+2}
    v_lshl_add_u32 v{V_VB}, v{V_T+1}, 4, v{V_VB}
    v_add_u32 v{V_VB}, {KT}, v{V_VB}
    v_mov_b32 v{V_RA}, 0
    s_lshl_b32 s{S_TMP}, s{S_W}, 2
    v_lshl_add_u32 v{V_CO}, v1, 3, s{S_TMP}
    v_lshlrev_b32 v{V_TOK}, 2, v{V_T+2}         ; 4g
    v_bfe_u32 v{V_S+2}, v0, 1, 1
    v_lshlrev_b32 v{V_S+2}, 4, v{V_S+2}
    v_mov_b32 v{V_S+3}, 0xffff
    v_lshlrev_b32 v{V_S+3}, v{V_S+2}, v{V_S+3}
    v_bfe_u32 v{V_S+2}, v0, 2, 2
    """)
    for j in range(4):
        a(f"""
        v_cmp_eq_u32 vcc, {j}, v{V_S+2}
        s_nop 1
        v_cndmask_b32 v{V_MASK+j}, 0, v{V_S+3}, vcc
        """)
    a(f"""
    v_mov_b32 v{V_M}, {NEG_BIG:#x}
    v_mov_b32 v{V_L}, 0
    """)
    for r in range(8):
        a(f"v_mov_b32 v{V_O+r}, 0")
    a("s_barrier")
    a("s_waitcnt lgkmcnt(0)")
    calc_np()
    a(f"""
    s_cselect_b32 s{S_REMD}, 0, 16
    s_lshl_b32 s{S_TMP}, s{S_NP}, 4
    s_sub_i32 s{S_REML}, s{S_CL}, s{S_TMP}
    s_add_i32 s{S_REML}, s{S_REML}, 16
    s_mov_b32 s{S_U}, s{S_W}
    s_mul_i32 s{S_SLOT}, s{S_W}, {SLOT}
    s_add_u32 s{S_SLOT}, s{S_SLOT}, {RB}
    s_mov_b32 s{S_RDY}, 0
    s_mov_b32 s{S_NKF}, {BIG:#x}
    s_mov_b32 s{S_MASKU}, -1
    s_waitcnt vmcnt(0)
    L_c_loop:
    s_lshl_b32 s{S_NEED}, s{S_U}, 1
    v_add_u32 v{V_KA}, s{S_SLOT}, v{V_KB}
    v_add_u32 v{V_VA}, s{S_SLOT}, v{V_VB}
    L_c_pk:
    s_cmp_gt_i32 s{S_RDY}, s{S_NEED}
    s_cbranch_scc1 L_c_k
    s_cmp_ge_u32 s{S_U}, s{S_NKF}
    s_cbranch_scc1 L_c_done
    ds_read_b128 {vr(V_T)}, v{V_RA} offset:{RDY}
    s_waitcnt lgkmcnt(0)
    v_readfirstlane_b32 s{S_RDY}, v{V_T}
    v_readfirstlane_b32 s{S_NKF}, v{V_T+1}
    v_readfirstlane_b32 s{S_MASKU}, v{V_T+2}
    s_branch L_c_pk
    L_c_k:
    """)
    for jj in range(8):
        a(f"ds_read_b128 {vr(V_K+4*jj)}, v{V_KA} offset:{jj*64}")
    a(f"""
    s_add_u32 s{S_NEED}, s{S_NEED}, 1
    s_cmp_eq_u32 s{S_U}, s{S_MASKU}
    s_cselect_b32 s{S_REM}, s{S_REML}, s{S_REMD}
    s_add_u32 s{S_U}, s{S_U}, 2
    """)
    for jj in range(8):
        a(f"s_waitcnt lgkmcnt({7-jj})")
        c = "0" if jj == 0 else vr(V_S)
        a(f"v_mfma_f32_16x16x32_bf16 {vr(V_S)}, {vr(V_K+4*jj)}, {vr(V_Q+4*jj)}, {c}")
    a(f"""
    s_add_u32 s{S_SLOT}, s{S_SLOT}, {2*SLOT}
    s_cmp_ge_u32 s{S_SLOT}, {RB+R*SLOT}
    s_cselect_b32 s{S_TMP}, {R*SLOT}, 0
    s_sub_u32 s{S_SLOT}, s{S_SLOT}, s{S_TMP}
    s_nop 1
    s_cmp_ge_i32 s{S_REM}, 16
    s_cbranch_scc1 L_nomask
    v_mov_b32 v{V_T}, {MASKED_RAW:#x}
    v_sub_u32 v{V_T+1}, s{S_REM}, v{V_TOK}
    """)
    for r in range(4):
        a(f"""
        v_cmp_lt_i32 vcc, {r}, v{V_T+1}
        s_nop 1
        v_cndmask_b32 v{V_S+r}, v{V_T}, v{V_S+r}, vcc
        """)
    a(f"""
    L_nomask:
    v_max3_f32 v{V_T}, v{V_S}, v{V_S+1}, v{V_S+2}
    v_max_f32 v{V_T}, v{V_T}, v{V_S+3}
    v_mov_b32 v{V_T+1}, v{V_T}
    s_nop 1
    v_permlane16_swap_b32 v{V_T}, v{V_T+1}
    v_max_f32 v{V_T}, v{V_T}, v{V_T+1}
    v_mov_b32 v{V_T+1}, v{V_T}
    s_nop 1
    v_permlane32_swap_b32 v{V_T}, v{V_T+1}
    v_max_f32 v{V_T}, v{V_T}, v{V_T+1}
    v_mul_f32 v{V_T}, s{S_C}, v{V_T}
    v_max_f32 v{V_T}, v{V_T}, v{V_M}
    v_sub_f32 v{V_ALPHA}, v{V_M}, v{V_T}
    v_mov_b32 v{V_M}, v{V_T}
    v_exp_f32 v{V_ALPHA}, v{V_ALPHA}
    """)
    for r in range(4):
        a(f"v_fma_f32 v{V_S+r}, v{V_S+r}, s{S_C}, -v{V_M}")
    for r in range(4):
        a(f"v_exp_f32 v{V_S+r}, v{V_S+r}")

    def qp(r):
        return "quad_perm:[0,0,2,2] row_mask:0xf bank_mask:0xf" if r % 2 == 0 else "quad_perm:[1,1,3,3] row_mask:0xf bank_mask:0xf"
    for r in range(8):
        a(f"v_mul_f32_dpp v{V_O+r}, v{V_ALPHA}, v{V_O+r} {qp(r)}")
    a(f"""
    v_add_f32 v{V_T}, v{V_S}, v{V_S+1}
    v_add_f32 v{V_T+1}, v{V_S+2}, v{V_S+3}
    v_add_f32 v{V_T}, v{V_T}, v{V_T+1}
    v_fma_f32 v{V_L}, v{V_L}, v{V_ALPHA}, v{V_T}
    """)
    for u in range(4):
        a(f"v_cvt_pk_bf16_f32 v{V_S+u}, v{V_S+u}, v{V_S+u}")
    for u in range(4):
        for j in range(4):
            a(f"v_and_b32 v{V_A+4*u+j}, v{V_S+u}, v{V_MASK+j}")
    a(f"""
    L_c_pv:
    s_cmp_gt_i32 s{S_RDY}, s{S_NEED}
    s_cbranch_scc1 L_c_v
    ds_read_b128 {vr(V_T)}, v{V_RA} offset:{RDY}
    s_waitcnt lgkmcnt(0)
    v_readfirstlane_b32 s{S_RDY}, v{V_T}
    v_readfirstlane_b32 s{S_NKF}, v{V_T+1}
    v_readfirstlane_b32 s{S_MASKU}, v{V_T+2}
    s_branch L_c_pv
    L_c_v:
    """)
    for u in range(4):
        for hf in range(2):
            a(f"ds_read_b128 {vr(V_V+8*u+4*hf)}, v{V_VA} offset:{u*512+hf*256}")
    a(f"v_mov_b32 v{V_T}, s{S_U}")
    a(f"v_add_u32 v{V_T}, -1, v{V_T}")
    k = 0
    for u in range(4):
        for hf in range(2):
            a(f"s_waitcnt lgkmcnt({7-k})")
            if k == 7:
                a(f"ds_write_b32 v{V_CO}, v{V_T} offset:{CONS}")
            a(f"v_mfma_f32_16x16x32_bf16 {vr(V_O+4*hf)}, {vr(V_A+4*u)}, {vr(V_V+8*u+4*hf)}, {vr(V_O+4*hf)}")
            k += 1
    a(f"""
    s_branch L_c_loop
    L_c_done:
    """)
    stamp(3)
    a(f"""
    v_mov_b32 v{V_T+1}, v{V_L}
    v_lshlrev_b32 v{V_T}, 4, v1                 ; lane*16
    v_lshlrev_b32 v{V_T+2}, 3, v1               ; lane*8
    v_permlane16_swap_b32 v{V_L}, v{V_T+1}
    v_add_f32 v{V_L}, v{V_L}, v{V_T+1}
    v_mov_b32 v{V_T+1}, v{V_L}
    s_add_u32 s{S_TMP}, s{S_NKF}, 1
    s_and_b32 s{S_TMP}, s{S_TMP}, 1
    v_permlane32_swap_b32 v{V_L}, v{V_T+1}
    v_add_f32 v{V_L}, v{V_L}, v{V_T+1}
    s_cmp_eq_u32 s{S_TMP}, s{S_W}
    s_cbranch_scc1 L_fin
    ds_write_b128 v{V_T}, {vr(V_O)} offset:{MERGE}
    ds_write_b128 v{V_T}, {vr(V_O+4)} offset:{MERGE+1024}
    ds_write_b64 v{V_T+2}, v[{V_M}:{V_L}] offset:{MERGE+2048}
    s_waitcnt lgkmcnt(0)
    s_barrier
    s_branch L_end
    L_fin:
    s_barrier
    ds_read_b64 v[{V_A}:{V_A+1}], v{V_T+2} offset:{MERGE+2048}
    ds_read_b128 {vr(V_K)}, v{V_T} offset:{MERGE}
    ds_read_b128 {vr(V_K+4)}, v{V_T} offset:{MERGE+1024}
    v_and_b32 v{V_T+2}, 1, v1
    v_lshlrev_b32 v{V_T+2}, 3, v{V_T+2}         ; q*8
    s_waitcnt lgkmcnt(2)
    v_max_f32 v{V_T+1}, v{V_M}, v{V_A}
    v_sub_f32 v{V_ALPHA}, v{V_M}, v{V_T+1}
    v_sub_f32 v{V_A}, v{V_A}, v{V_T+1}
    v_exp_f32 v{V_ALPHA}, v{V_ALPHA}
    v_exp_f32 v{V_A}, v{V_A}
    v_min_u32 v{V_M}, -2, v{V_T+1}
    v_mul_f32 v{V_L}, v{V_L}, v{V_ALPHA}
    v_fmac_f32 v{V_L}, v{V_A}, v{V_A+1}
    """)
    for r in range(8):
        a(f"v_mul_f32_dpp v{V_O+r}, v{V_ALPHA}, v{V_O+r} {qp(r)}")
    a("s_waitcnt lgkmcnt(0)")
    for r in range(8):
        a(f"v_fmac_f32_dpp v{V_O+r}, v{V_A}, v{V_K+r} {qp(r)}")
    a(f"v_min_u32 v{V_L}, -2, v{V_L}")
    for r in range(8):
        a(f"v_min_u32 v{V_O+r}, -2, v{V_O+r}")
    a(f"""
    buffer_store_dwordx4 {vr(V_O)}, v{V_T}, s[{S_WS}:{S_WS+3}], s{S_WSO} offen sc1
    buffer_store_dwordx4 {vr(V_O+4)}, v{V_T}, s[{S_WS}:{S_WS+3}], s{S_WSO} offen offset:1024 sc1
    s_mov_b64 exec, 3
    buffer_store_dwordx2 v[{V_M}:{V_L}], v{V_T+2}, s[{S_WS}:{S_WS+3}], s{S_WSO} offen offset:2048 sc1
    s_mov_b64 exec, -1
    """)
    stamp(4)
    a(f"""
    v_lshrrev_b32 v{V_KA}, 1, v1
    v_mul_u32_u24 v{V_KA}, {WS_SLOT}, v{V_KA}
    v_lshl_add_u32 v{V_VA}, v{V_T+2}, 2, v{V_KA} ; + 32*(l&1)
    s_lshl_b32 s{S_TMP}, s{S_J}, 6
    v_add_u32 v{V_VA}, s{S_TMP}, v{V_VA}
    s_mul_i32 s{S_OFF}, s{S_H}, {32*WS_SLOT}
    s_mov_b32 s{S_NEED}, 0x40000
    L_poll:
    buffer_load_dwordx4 {vr(V_A)}, v{V_KA}, s[{S_WS}:{S_WS+3}], s{S_OFF} offen offset:2048 sc1
    buffer_load_dwordx4 {vr(V_K)}, v{V_VA}, s[{S_WS}:{S_WS+3}], s{S_OFF} offen sc1
    buffer_load_dwordx4 {vr(V_K+4)}, v{V_VA}, s[{S_WS}:{S_WS+3}], s{S_OFF} offen offset:16 sc1
    s_waitcnt vmcnt(2)
    v_max3_u32 v{V_T}, v{V_A}, v{V_A+1}, v{V_A+2}
    s_waitcnt vmcnt(1)
    v_max3_u32 v{V_T}, v{V_T}, v{V_A+3}, v{V_K}
    v_max3_u32 v{V_T}, v{V_T}, v{V_K+1}, v{V_K+2}
    s_waitcnt vmcnt(0)
    v_max3_u32 v{V_T}, v{V_T}, v{V_K+3}, v{V_K+4}
    v_max3_u32 v{V_T}, v{V_T}, v{V_K+5}, v{V_K+6}
    v_max_u32 v{V_T}, v{V_T}, v{V_K+7}
    v_cmp_eq_u32 vcc, -1, v{V_T}
    s_sub_i32 s{S_NEED}, s{S_NEED}, 1
    s_cmp_lt_i32 s{S_NEED}, 0
    s_cselect_b64 exec, 0, vcc
    s_cbranch_execnz L_poll
    s_mov_b64 exec, -1
    """)
    stamp(5)
    M0, L0, M1, L1 = V_A, V_A + 1, V_A + 2, V_A + 3
    X0, X1, T0, T1 = V_A + 4, V_A + 5, V_A + 6, V_A + 7

    def dpp(op, d, s0, s1, ctl):
        a(f"{op}_dpp v{d}, v{s0}, v{s1} {ctl} row_mask:0xf bank_mask:0xf")
    a("s_nop 0")
    dpp("v_max_f32", X0, M0, M0, "row_ror:2")
    dpp("v_max_f32", X1, M1, M1, "row_ror:2")
    for rot in (4, 8):
        a("s_nop 0")
        dpp("v_max_f32", X0, X0, X0, f"row_ror:{rot}")
        dpp("v_max_f32", X1, X1, X1, f"row_ror:{rot}")
    for sw in ("v_permlane16_swap_b32", "v_permlane32_swap_b32"):
        a(f"""
        v_mov_b32 v{T0}, v{X0}
        v_mov_b32 v{T1}, v{X1}
        s_nop 0
        {sw} v{X0}, v{T0}
        {sw} v{X1}, v{T1}
        v_max_f32 v{X0}, v{X0}, v{T0}
        v_max_f32 v{X1}, v{X1}, v{T1}
        """)
    a(f"""
    v_sub_f32 v{M0}, v{M0}, v{X0}
    v_sub_f32 v{M1}, v{M1}, v{X1}
    v_exp_f32 v{M0}, v{M0}
    v_exp_f32 v{M1}, v{M1}
    v_bfe_u32 v{T0}, v1, 4, 1
    v_mul_f32 v{L0}, v{L0}, v{M0}
    v_mul_f32 v{L1}, v{L1}, v{M1}
    """)
    for r in range(8):
        a(f"v_mul_f32 v{V_K+r}, v{V_K+r}, v{(M0, M1)[r & 1]}")
    a(f"""
    v_lshlrev_b32 v{T0}, 9, v{T0}
    v_permlane16_swap_b32 v{L0}, v{L1}
    v_permlane16_swap_b32 v{V_K}, v{V_K+1}
    v_permlane16_swap_b32 v{V_K+2}, v{V_K+3}
    v_permlane16_swap_b32 v{V_K+4}, v{V_K+5}
    v_permlane16_swap_b32 v{V_K+6}, v{V_K+7}
    v_add_f32 v{L0}, v{L0}, v{L1}
    v_add_f32 v{V_K}, v{V_K}, v{V_K+1}
    v_add_f32 v{V_K+2}, v{V_K+2}, v{V_K+3}
    v_add_f32 v{V_K+4}, v{V_K+4}, v{V_K+5}
    v_add_f32 v{V_K+6}, v{V_K+6}, v{V_K+7}
    v_mov_b32 v{L1}, v{L0}
    v_lshrrev_b32 v{T1}, 5, v1                  ; sel
    v_permlane32_swap_b32 v{V_K}, v{V_K+4}
    v_permlane32_swap_b32 v{V_K+2}, v{V_K+6}
    v_permlane32_swap_b32 v{L0}, v{L1}
    v_add_f32 v{V_K}, v{V_K}, v{V_K+4}
    v_add_f32 v{V_K+2}, v{V_K+2}, v{V_K+6}
    v_add_f32 v{L0}, v{L0}, v{L1}
    """)
    for rot in (2, 4, 8):
        dpp("v_add_f32", V_K, V_K, V_K, f"row_ror:{rot}")
        dpp("v_add_f32", V_K + 2, V_K + 2, V_K + 2, f"row_ror:{rot}")
        dpp("v_add_f32", L0, L0, L0, f"row_ror:{rot}")
    a(f"""
    v_lshl_add_u32 v{T0}, v{T1}, 4, v{T0}       ; + sel*16
    v_lshl_add_u32 v{T0}, v{V_T+2}, 2, v{T0}    ; + parity*32
    v_rcp_f32 v{L1}, v{L0}
    s_and_b32 s{S_TMP}, s{S_J}, 3
    s_lshl_b32 s{S_TMP}, s{S_TMP}, 6            ; 4*(j&3)*16
    s_bfe_u32 s{S_T2}, s{S_J}, 0x20002
    s_lshl_b32 s{S_T2}, s{S_T2}, 2              ; g'*4
    s_add_u32 s{S_TMP}, s{S_TMP}, s{S_T2}
    v_fma_f32 v{X0}, -v{L0}, v{L1}, 1.0
    v_fma_f32 v{L1}, v{X0}, v{L1}, v{L1}
    s_lshr_b32 s{S_T2}, s{S_J}, 4
    s_lshl_b32 s{S_T2}, s{S_T2}, 8              ; hf*256
    s_add_u32 s{S_TMP}, s{S_TMP}, s{S_T2}
    s_lshl_b32 s{S_T2}, s{S_H}, 10
    s_add_u32 s{S_TMP}, s{S_TMP}, s{S_T2}
    v_mul_f32 v{V_K}, v{V_K}, v{L1}
    v_mul_f32 v{V_K+2}, v{V_K+2}, v{L1}
    v_cvt_pk_bf16_f32 v{V_K}, v{V_K}, v{V_K+2}
    s_mov_b32 exec_lo, 0x00030003
    s_mov_b32 exec_hi, 0x00030003
    buffer_store_dword v{V_K}, v{T0}, s[{S_OUT}:{S_OUT+3}], s{S_TMP} offen
    """)
    stamp(7)
    a("L_end:")
    if o.stamps:
        a(f"""
        s_waitcnt lgkmcnt(0) vmcnt(0)
        s_mov_b64 exec, -1
        v_lshrrev_b32 v4, 6, v0
        s_nop 0
        v_readfirstlane_b32 s{S_W}, v4
        """)
        srd(S_WS, 18, WS_BYTES)
        a(f"""
        s_getreg_b32 s{ST0+16}, hwreg(HW_REG_XCC_ID)
        s_getreg_b32 s{ST0+17}, hwreg(HW_REG_HW_ID)
        s_mul_i32 s{S_TMP}, s2, 4
        s_add_u32 s{S_TMP}, s{S_TMP}, s{S_W}
        s_lshl_b32 s{S_TMP}, s{S_TMP}, 7
        s_add_u32 s{S_TMP}, s{S_TMP}, {256*WS_SLOT}
        s_mov_b64 exec, 1
        v_mov_b32 v4, 0
        """)
        for i in range(18):
            a(f"v_mov_b32 v5, s{ST0+i}")
            a(f"buffer_store_dword v5, v4, s[{S_WS}:{S_WS+3}], s{S_TMP} offen offset:{4*i}")
            a("s_nop 1")
    a("L_exit:")
    a("s_endpgm")

    out = HEADER + f"; @launch grid=(256,1,1) block=(256,1,1) lds={LDS_BYTES}\n"
    out += f""".amdgcn_target "amdgcn-amd-amdhsa--gfx950"
.text
.globl {NAME}_kernel
.p2align 8
.type {NAME}_kernel,@function
"""
    out += a.text()
    acc = (NV + 3) // 4 * 4
    out += f""".section .rodata,"a"
.p2align 6
.amdhsa_kernel {NAME}_kernel
  .amdhsa_next_free_vgpr {NV}
  .amdhsa_next_free_sgpr 96
  .amdhsa_accum_offset {acc}
  .amdhsa_group_segment_fixed_size 0
  .amdhsa_kernarg_size 64
  .amdhsa_user_sgpr_count 2
  .amdhsa_user_sgpr_kernarg_segment_ptr 1
  .amdhsa_system_sgpr_workgroup_id_x 1
.end_amdhsa_kernel
"""
    return out


if __name__ == "__main__":
    p = argparse.ArgumentParser()
    p.add_argument("-o", default="cdna_kernels/" + NAME + ".s")
    p.add_argument("--w", type=int, default=22)
    p.add_argument("--ring", type=int, default=8)
    p.add_argument("--dyn", type=int, default=10)
    p.add_argument("--la", type=int, default=8)
    p.add_argument("--pf", type=int, default=11)
    p.add_argument("--lp", type=int, default=2)
    p.add_argument("--tstride", type=int, default=4096)
    p.add_argument("--pol", default="nt")
    p.add_argument("--stamps", action="store_true")
    o = p.parse_args()
    open(o.o, "w").write(gen(o))
```

```python
import argparse
from gen import A, vr, HEADER, NAME, KV_BYTES, C_SCALE, NEG_BIG, MASKED_RAW

WS_SLOT = 2176
TICK_OFF = 0x200000
WS_BYTES = TICK_OFF + 64 * 4096
KPAD = 1056
KT = 8 * KPAD
SLOT = KT + 8192
RDY, CONS, QENT, DT, MERGE, RB = 0, 1024, 1536, 1792, 3328, 5888
BIG = 0x7fffffff


def gen(o):
    W, R, D, LA = o.w, o.ring, o.dyn, o.la
    assert (D + 1) * 32 <= 384
    pol = (" " + o.pol) if o.pol else ""
    a = A()
    LDS_BYTES = RB + R * SLOT
    S_K, S_V, S_Q, S_WS, S_OUT, S_DBG, S_BT = 20, 24, 28, 32, 36, 40, 44
    (S_CL, S_NP, S_S, S_U, S_REM, S_OFF, S_W, S_H, S_J, S_C, S_TMP, S_T2, S_SLOT, S_RDY, S_NEED,
     S_WSO) = range(48, 64)
    ST0 = 64
    S_NKF, S_MASKU, S_REML, S_REMD, S_BARU, S_E, S_ND, S_TK, S_P0, S_P1, S_G = range(82, 93)
    LP = o.lp

    def srd(base, ptr, nbytes):
        a(f"""
        s_mov_b32 s{base}, s{ptr}
        s_and_b32 s{base+1}, s{ptr+1}, 0xffff
        s_mov_b32 s{base+2}, {nbytes:#x}
        s_mov_b32 s{base+3}, 0x20000
        """)

    def stamp(i):
        if o.stamps:
            a(f"s_memrealtime s[{ST0+2*i}:{ST0+1+2*i}]")

    def calc_np():
        a(f"""
        s_min_i32 s{S_TMP}, s{S_CL}, 0x10000
        s_add_i32 s{S_NP}, s{S_TMP}, 15
        s_lshr_b32 s{S_NP}, s{S_NP}, 4
        s_cmp_lt_i32 s{S_CL}, 1
        s_cselect_b32 s{S_NP}, 0x1000, s{S_NP}
        s_cselect_b32 s{S_CL}, 0, s{S_TMP}
        """)

    def calc_s():
        a(f"""
        s_lshr_b32 s{S_S}, s{S_NP}, 5
        s_sub_i32 s{S_S}, s{S_S}, {D}
        s_max_i32 s{S_S}, s{S_S}, 0
        """)

    a(f"{NAME}_kernel:")
    if o.stamps:
        for i in range(18):
            a(f"s_mov_b32 s{ST0+i}, 0")
    a(f"""
    s_cmp_ge_u32 s2, 256
    s_cbranch_scc1 L_exit
    s_load_dwordx16 s[4:19], s[0:1], 0
    """)
    stamp(0)
    a(f"""
    v_lshrrev_b32 v4, 6, v0
    v_and_b32 v1, 63, v0
    v_readfirstlane_b32 s{S_W}, v4
    s_lshr_b32 s{S_H}, s2, 5
    s_and_b32 s{S_J}, s2, 31
    s_cmp_lg_u32 s{S_W}, 0
    s_cbranch_scc1 L_other
    """)
    V_BT, V_BT2, V_OK, V_OV, V_CW, V_FA, V_QI, V_QE, V_U2, V_Z = 2, 3, 8, 16, 24, 26, 27, 28, 29, 30
    V_PUB = 32
    a.c("---------------- loader ----------------")
    a(f"""
    v_lshlrev_b32 v6, 7, v1
    s_lshl_b32 s{S_T2}, s{S_J}, 2
    v_add_u32 v6, s{S_T2}, v6
    s_lshl_b32 s{S_TMP}, s{S_H}, 9
    v_lshrrev_b32 v4, 5, v1
    v_and_b32 v5, 31, v1
    v_lshl_add_u32 v{V_OV}, v5, 4, s{S_TMP}
    v_lshl_add_u32 v{V_OV}, v4, 12, v{V_OV}     ; V: par*4096 + h*512 + c*16
    v_xor_b32 v5, v5, v4
    v_lshl_add_u32 v{V_OK}, v5, 4, s{S_TMP}
    v_lshl_add_u32 v{V_OK}, v4, 12, v{V_OK}
    v_add_u32 v7, 0x2000, v6
    """)
    for i in range(1, 8):
        a(f"v_add_u32 v{V_OK+i}, {i*8192 - (i & 3)*KPAD}, v{V_OK}")
        a(f"v_add_u32 v{V_OV+i}, {i*8192 - (i & 3)*1024}, v{V_OV}")
    a(f"""
    s_mov_b32 s{S_BT+2}, 16384
    s_mov_b32 s{S_BT+3}, 0x20000
    s_mov_b32 s{S_K+2}, {KV_BYTES:#x}
    s_mov_b32 s{S_K+3}, 0x20000
    s_mov_b32 s{S_V+2}, {KV_BYTES:#x}
    s_mov_b32 s{S_V+3}, 0x20000
    s_waitcnt lgkmcnt(0)
    s_load_dword s{S_CL}, s[12:13], 0
    s_load_dword s{S_P0}, s[10:11], s{S_T2}
    s_load_dword s{S_P1}, s[10:11], s{S_T2} offset:128
    s_mov_b32 s{S_BT}, s10
    s_and_b32 s{S_BT+1}, s11, 0xffff
    buffer_load_dword v{V_BT}, v6, s[{S_BT}:{S_BT+3}], 0 offen
    buffer_load_dword v{V_BT2}, v7, s[{S_BT}:{S_BT+3}], 0 offen
    s_mov_b32 s{S_K}, s6
    s_and_b32 s{S_K+1}, s7, 0xffff
    s_mov_b32 s{S_V}, s8
    s_and_b32 s{S_V+1}, s9, 0xffff
    v_lshlrev_b32 v{V_FA}, 4, v1
    v_mov_b32 v{V_Z}, 0
    v_mov_b32 v{V_QI}, 0
    v_mov_b32 v{V_U2}, 0
    v_mov_b32 v{V_CW}, 0
    v_mov_b32 v{V_CW+1}, 0
    v_mov_b32 v{V_PUB}, 0
    v_mov_b32 v{V_PUB+1}, {BIG:#x}
    v_mov_b32 v{V_PUB+2}, -1
    v_mov_b32 v{V_PUB+3}, 0
    s_mov_b32 s{S_U}, 0
    s_mov_b32 s{S_SLOT}, {RB}
    s_waitcnt lgkmcnt(0)
    ds_write_b128 v{V_FA}, {vr(V_PUB)} offset:{RDY}
    """)
    calc_np()
    calc_s()
    a(f"s_min_u32 s{S_BARU}, s{S_S}, 1")
    stamp(1)
    a(f"""
    L_ld_loop:
    s_cmp_lg_u32 s{S_U}, s{S_BARU}
    s_cbranch_scc1 L_ld_nobar
    s_waitcnt lgkmcnt(0)
    s_barrier
    ds_read_b64 v[{V_CW}:{V_CW+1}], v{V_Z} offset:{CONS}
    ds_read_b32 v{V_QE}, v{V_QI} offset:{QENT}
    L_ld_nobar:
    s_cmp_ge_u32 s{S_U}, s{S_S}
    s_cbranch_scc1 L_ld_dyn
    v_readlane_b32 s{S_OFF}, v{V_BT}, s{S_U}
    v_readlane_b32 s{S_T2}, v{V_BT2}, s{S_U}
    s_cmp_ge_u32 s{S_U}, 64
    s_cselect_b32 s{S_OFF}, s{S_T2}, s{S_OFF}
    s_cmp_lt_u32 s{S_U}, 2
    s_cselect_b32 s{S_OFF}, s{S_P0}, s{S_OFF}
    s_mov_b32 s{S_P0}, s{S_P1}
    s_lshl_b32 s{S_OFF}, s{S_OFF}, 16
    L_ld_chk:
    s_waitcnt lgkmcnt(0)
    v_readfirstlane_b32 s{S_TMP}, v{V_CW}
    v_readfirstlane_b32 s{S_RDY}, v{V_CW+1}
    s_bitcmp1_b32 s{S_U}, 0
    s_cselect_b32 s{S_TMP}, s{S_RDY}, s{S_TMP}
    s_add_u32 s{S_TMP}, s{S_TMP}, {R-1}
    s_cmp_ge_u32 s{S_TMP}, s{S_U}
    s_cbranch_scc0 L_ld_rechk
    v_add_u32 v{V_QI}, 4, v{V_QI}
    v_and_b32 v{V_QI}, 63, v{V_QI}
    """)
    for idx in range(16):
        which, i = idx >> 3, idx & 7
        if i % 4 == 0:
            base = (i // 4) * 4 * KPAD if which == 0 else KT + i * 1024
            a(f"s_add_u32 m0, s{S_SLOT}, {base}")
        a(f"s_waitcnt vmcnt({W-1})")
        srdn = (S_K, S_V)[which]
        voff = (V_OK, V_OV)[which] + i
        step = (KPAD, 1024)[which]
        a(f"buffer_load_dwordx4 v{voff}, s[{srdn}:{srdn+3}], s{S_OFF} offen offset:{(i & 3)*step}{pol} lds")
        if (idx + 1 - W) % 8 == 0:
            a(f"v_add_u32 v{V_PUB}, {(idx + 1 - W)//8}, v{V_U2}")
            a(f"ds_write_b128 v{V_FA}, {vr(V_PUB)} offset:{RDY}")
        if idx == o.pf:
            a(f"ds_read_b64 v[{V_CW}:{V_CW+1}], v{V_Z} offset:{CONS}")
            a(f"ds_read_b32 v{V_QE}, v{V_QI} offset:{QENT}")
    a(f"""
    v_add_u32 v{V_U2}, 2, v{V_U2}
    s_add_u32 s{S_SLOT}, s{S_SLOT}, {SLOT}
    s_cmp_ge_u32 s{S_SLOT}, {RB+R*SLOT}
    s_cselect_b32 s{S_SLOT}, {RB}, s{S_SLOT}
    s_add_u32 s{S_U}, s{S_U}, 1
    s_branch L_ld_loop
    L_ld_rechk:
    ds_read_b64 v[{V_CW}:{V_CW+1}], v{V_Z} offset:{CONS}
    s_branch L_ld_chk
    L_ld_requ:
    {"s_add_u32 s%d, s%d, 1" % (ST0+13, ST0+13) if o.stamps else ""}
    ds_read_b32 v{V_QE}, v{V_QI} offset:{QENT}
    L_ld_dyn:
    s_add_u32 s{S_T2}, s{S_U}, 1
    s_waitcnt lgkmcnt(0)
    v_readfirstlane_b32 s{S_E}, v{V_QE}
    s_and_b32 s{S_TMP}, s{S_E}, 0x3fff
    s_cmp_lg_u32 s{S_TMP}, s{S_T2}
    s_cbranch_scc1 L_ld_requ
    s_and_b32 s{S_OFF}, s{S_E}, 0xffff0000
    s_bitcmp0_b32 s{S_E}, 15
    s_cbranch_scc1 L_ld_nolast
    v_mov_b32 v{V_PUB+2}, s{S_U}
    L_ld_nolast:
    s_bitcmp0_b32 s{S_E}, 14
    s_cbranch_scc1 L_ld_chk
    v_mov_b32 v{V_PUB+1}, s{S_U}
    """)
    stamp(2)
    for r in range((W - 1) // 8, -1, -1):
        a(f"""
        v_add_u32 v{V_PUB}, {-r}, v{V_U2}
        s_waitcnt vmcnt({8*r})
        ds_write_b128 v{V_FA}, {vr(V_PUB)} offset:{RDY}
        """)
    stamp(3)
    if o.stamps:
        a(f"s_mov_b32 s{ST0+12}, s{S_U}")
    a("s_branch L_end")

    a(f"""
    L_other:
    s_cmp_lg_u32 s{S_W}, 3
    s_cbranch_scc1 L_cons
    """)
    a.c("---------------- scheduler ----------------")
    a(f"""
    v_mov_b32 v4, 0
    v_mov_b32 v5, 0
    v_lshlrev_b32 v2, 2, v1
    v_lshlrev_b32 v3, 3, v1
    ds_write_b64 v3, v[4:5] offset:{CONS}
    ds_write_b32 v2, v4 offset:{QENT}
    v_lshlrev_b32 v3, 4, v1
    v_mov_b32 v8, -1
    v_mov_b32 v9, -1
    v_mov_b32 v10, -1
    v_mov_b32 v11, -1
    s_mul_i32 s{S_WSO}, s2, {WS_SLOT}
    s_lshr_b32 s{S_TK}, s2, {5-LP}
    s_mul_i32 s{S_TK}, s{S_TK}, {o.tstride}
    s_add_u32 s{S_TK}, s{S_TK}, {TICK_OFF}
    s_lshr_b32 s{S_G}, s{S_J}, {5-LP}
    s_lshl_b32 s{S_T2}, s{S_H}, 5
    s_waitcnt lgkmcnt(0)
    s_load_dword s{S_CL}, s[12:13], 0
    """)
    srd(S_WS, 18, WS_BYTES)
    a(f"""
    buffer_store_dwordx4 v[8:11], v3, s[{S_WS}:{S_WS+3}], s{S_WSO} offen sc1
    buffer_store_dwordx4 v[8:11], v3, s[{S_WS}:{S_WS+3}], s{S_WSO} offen offset:1024 sc1
    s_mov_b64 exec, 1
    buffer_store_dwordx4 v[8:11], v3, s[{S_WS}:{S_WS+3}], s{S_WSO} offen offset:2048 sc1
    s_and_b32 s{S_TMP}, s{S_J}, {(32 >> LP) - 1}
    s_cbranch_scc1 L_s_nozero
    buffer_store_dword v4, v4, s[{S_WS}:{S_WS+3}], s{S_TK} offen sc1
    L_s_nozero:
    s_mov_b64 exec, -1
    s_barrier
    """)
    srd(S_DBG, 16, 256)
    srd(S_BT, 10, 16384)
    a("s_waitcnt lgkmcnt(0)")
    calc_np()
    calc_s()
    a(f"""
    s_lshl_b32 s{S_TMP}, s{S_S}, 5
    s_sub_u32 s{S_ND}, s{S_NP}, s{S_TMP}
    s_lshl_b32 s{S_TMP}, s{S_TMP}, 2
    """)
    for i in range(6):
        a(f"buffer_load_dword v{12+i}, v2, s[{S_BT}:{S_BT+3}], s{S_TMP} offen offset:{256*i}")
    a(f"""
    v_mov_b32 v6, 1
    s_waitcnt vmcnt(0)
    s_mov_b64 exec, 1
    buffer_atomic_add v6, v4, s[{S_DBG}:{S_DBG+3}], s{S_T2} offen
    s_mov_b64 exec, -1
    """)
    for i in range(6):
        a(f"ds_write_b32 v2, v{12+i} offset:{DT+256*i}")
    a(f"""
    s_mov_b64 exec, 1
    s_mov_b32 s{S_U}, s{S_S}
    s_lshl_b32 s{S_NEED}, s{S_U}, 1
    s_sub_i32 s{S_NEED}, s{S_NEED}, {LA}
    s_sub_i32 s{S_T2}, s{S_NEED}, 8
    L_s_far:
    ds_read_b32 v7, v4 offset:{RDY}
    s_waitcnt lgkmcnt(0)
    v_readfirstlane_b32 s{S_RDY}, v7
    s_cmp_ge_i32 s{S_RDY}, s{S_T2}
    s_cbranch_scc1 L_s_near
    s_sleep 8
    s_branch L_s_far
    L_s_near:
    s_lshl_b32 s{S_T2}, s{S_H}, 5
    s_mov_b32 s{S_OFF}, 0x40000
    L_s_cnt:
    buffer_load_dword v7, v4, s[{S_DBG}:{S_DBG+3}], s{S_T2} offen sc1
    s_waitcnt vmcnt(0)
    v_readfirstlane_b32 s{S_TMP}, v7
    s_sub_u32 s{S_OFF}, s{S_OFF}, 1
    s_cbranch_scc1 L_s_go
    s_cmp_lt_u32 s{S_TMP}, 32
    s_cbranch_scc1 L_s_cnt
    L_s_go:
    """)

    def wait_ready(lbl):
        a(f"""
        {lbl}:
        s_cmp_ge_i32 s{S_RDY}, s{S_NEED}
        s_cbranch_scc1 {lbl}_ok
        ds_read_b32 v7, v4 offset:{RDY}
        s_waitcnt lgkmcnt(0)
        v_readfirstlane_b32 s{S_RDY}, v7
        s_branch {lbl}
        {lbl}_ok:
        s_add_i32 s{S_NEED}, s{S_NEED}, 2
        """)

    def request(v):
        a(f"""
        v_mov_b32 v{v}, 1
        buffer_atomic_add v{v}, v4, s[{S_WS}:{S_WS+3}], s{S_TK} offen sc0
        """)

    def emit(v):
        a(f"""
        s_lshl_b32 s{S_T2}, s{S_TMP}, 2
        v_mov_b32 v12, s{S_T2}
        ds_read_b32 v13, v12 offset:{DT}
        s_add_u32 s{S_TMP}, s{S_TMP}, 1
        s_cmp_eq_u32 s{S_TMP}, s{S_ND}
        s_cselect_b32 s{S_TMP}, 0x8000, 0
        s_and_b32 s{S_T2}, s{S_U}, 15
        s_lshl_b32 s{S_T2}, s{S_T2}, 2
        s_add_u32 s{S_U}, s{S_U}, 1
        s_or_b32 s{S_TMP}, s{S_TMP}, s{S_U}
        v_mov_b32 v12, s{S_T2}
        s_waitcnt lgkmcnt(0)
        v_lshl_or_b32 v13, v13, 16, s{S_TMP}
        ds_write_b32 v12, v13 offset:{QENT}
        """)

    wait_ready("L_s_w0")
    request(20)
    a("L_s_loop:")
    for ph in range(2):
        cur, nxt = (20, 21) if ph == 0 else (21, 20)
        wait_ready(f"L_s_w{ph+1}")
        request(nxt)
        a(f"""
        s_waitcnt vmcnt(1)
        v_readfirstlane_b32 s{S_TMP}, v{cur}
        s_min_u32 s{S_TMP}, s{S_TMP}, 0x10000
        s_lshl_b32 s{S_TMP}, s{S_TMP}, {LP}
        s_add_u32 s{S_TMP}, s{S_TMP}, s{S_G}
        s_cmp_ge_u32 s{S_TMP}, s{S_ND}
        s_cbranch_scc1 L_s_end{ph}
        """)
        emit(cur)
    a("s_branch L_s_loop")
    a(f"""
    L_s_end0:
    s_waitcnt vmcnt(0)
    v_mov_b32 v20, v21
    L_s_end1:
    s_waitcnt vmcnt(0)
    v_readfirstlane_b32 s{S_TMP}, v20
    s_min_u32 s{S_TMP}, s{S_TMP}, 0x10000
    s_lshl_b32 s{S_TMP}, s{S_TMP}, {LP}
    s_add_u32 s{S_TMP}, s{S_TMP}, s{S_G}
    s_cmp_ge_u32 s{S_TMP}, s{S_ND}
    s_cbranch_scc1 L_s_fin
    """)
    emit(20)
    a(f"""
    L_s_fin:
    s_and_b32 s{S_T2}, s{S_U}, 15
    s_lshl_b32 s{S_T2}, s{S_T2}, 2
    s_add_u32 s{S_U}, s{S_U}, 1
    s_or_b32 s{S_TMP}, s{S_U}, 0x4000
    v_mov_b32 v12, s{S_T2}
    v_mov_b32 v13, s{S_TMP}
    ds_write_b32 v12, v13 offset:{QENT}
    s_branch L_end
    """)

    V_KB, V_VB, V_KA, V_VA, V_RA, V_CO = 2, 3, 4, 5, 6, 7
    V_MASK, V_M, V_L, V_TOK, V_ALPHA, V_S, V_T, V_O, V_A, V_Q, V_K, V_V = 8, 12, 13, 14, 15, 16, 20, 24, 32, 48, 80, 112
    NV = 144
    a.c("---------------- consumers ----------------")
    a(f"""
    L_cons:
    s_sub_u32 s{S_W}, s{S_W}, 1
    v_and_b32 v{V_T+1}, 15, v0                  ; n / m
    v_bfe_u32 v{V_T+2}, v0, 4, 2                ; g
    ; Q: lane (g,n): (2h + (n&1))*512 + g*16
    v_and_b32 v{V_S}, 1, v0
    v_lshlrev_b32 v{V_S+1}, 9, v{V_S}
    v_lshl_add_u32 v{V_S+1}, v{V_T+2}, 4, v{V_S+1}
    s_lshl_b32 s{S_TMP}, s{S_H}, 10
    s_waitcnt lgkmcnt(0)
    s_load_dword s{S_CL}, s[12:13], 0
    """)
    srd(S_Q, 4, 8192)
    for jj in range(8):
        a(f"buffer_load_dwordx4 {vr(V_Q+4*jj)}, v{V_S+1}, s[{S_Q}:{S_Q+3}], s{S_TMP} offen offset:{jj*64}")
    srd(S_WS, 18, WS_BYTES)
    srd(S_OUT, 14, 8192)
    a(f"""
    s_mul_i32 s{S_WSO}, s2, {WS_SLOT}
    s_mov_b32 s{S_C}, {C_SCALE:#x}
    v_lshrrev_b32 v{V_KB}, 1, v{V_T+1}
    v_mul_u32_u24 v{V_KB}, {KPAD}, v{V_KB}
    v_lshl_add_u32 v{V_KB}, v{V_S}, 9, v{V_KB}
    v_xor_b32 v{V_S+2}, v{V_T+2}, v{V_S}
    v_lshl_add_u32 v{V_KB}, v{V_S+2}, 4, v{V_KB}
    v_lshlrev_b32 v{V_VB}, 11, v{V_T+2}
    v_lshl_add_u32 v{V_VB}, v{V_T+1}, 4, v{V_VB}
    v_add_u32 v{V_VB}, {KT}, v{V_VB}
    v_mov_b32 v{V_RA}, 0
    s_lshl_b32 s{S_TMP}, s{S_W}, 2
    v_lshl_add_u32 v{V_CO}, v1, 3, s{S_TMP}
    v_lshlrev_b32 v{V_TOK}, 2, v{V_T+2}         ; 4g
    v_bfe_u32 v{V_S+2}, v0, 1, 1
    v_lshlrev_b32 v{V_S+2}, 4, v{V_S+2}
    v_mov_b32 v{V_S+3}, 0xffff
    v_lshlrev_b32 v{V_S+3}, v{V_S+2}, v{V_S+3}
    v_bfe_u32 v{V_S+2}, v0, 2, 2
    """)
    for j in range(4):
        a(f"""
        v_cmp_eq_u32 vcc, {j}, v{V_S+2}
        s_nop 1
        v_cndmask_b32 v{V_MASK+j}, 0, v{V_S+3}, vcc
        """)
    a(f"""
    v_mov_b32 v{V_M}, {NEG_BIG:#x}
    v_mov_b32 v{V_L}, 0
    """)
    for r in range(8):
        a(f"v_mov_b32 v{V_O+r}, 0")
    a("s_barrier")
    a("s_waitcnt lgkmcnt(0)")
    calc_np()
    a(f"""
    s_cselect_b32 s{S_REMD}, 0, 16
    s_lshl_b32 s{S_TMP}, s{S_NP}, 4
    s_sub_i32 s{S_REML}, s{S_CL}, s{S_TMP}
    s_add_i32 s{S_REML}, s{S_REML}, 16
    s_mov_b32 s{S_U}, s{S_W}
    s_mul_i32 s{S_SLOT}, s{S_W}, {SLOT}
    s_add_u32 s{S_SLOT}, s{S_SLOT}, {RB}
    s_mov_b32 s{S_RDY}, 0
    s_mov_b32 s{S_NKF}, {BIG:#x}
    s_mov_b32 s{S_MASKU}, -1
    s_waitcnt vmcnt(0)
    L_c_loop:
    s_lshl_b32 s{S_NEED}, s{S_U}, 1
    v_add_u32 v{V_KA}, s{S_SLOT}, v{V_KB}
    v_add_u32 v{V_VA}, s{S_SLOT}, v{V_VB}
    L_c_pk:
    s_cmp_gt_i32 s{S_RDY}, s{S_NEED}
    s_cbranch_scc1 L_c_k
    s_cmp_ge_u32 s{S_U}, s{S_NKF}
    s_cbranch_scc1 L_c_done
    ds_read_b128 {vr(V_T)}, v{V_RA} offset:{RDY}
    s_waitcnt lgkmcnt(0)
    v_readfirstlane_b32 s{S_RDY}, v{V_T}
    v_readfirstlane_b32 s{S_NKF}, v{V_T+1}
    v_readfirstlane_b32 s{S_MASKU}, v{V_T+2}
    s_branch L_c_pk
    L_c_k:
    """)
    for jj in range(8):
        a(f"ds_read_b128 {vr(V_K+4*jj)}, v{V_KA} offset:{jj*64}")
    a(f"""
    s_add_u32 s{S_NEED}, s{S_NEED}, 1
    s_cmp_eq_u32 s{S_U}, s{S_MASKU}
    s_cselect_b32 s{S_REM}, s{S_REML}, s{S_REMD}
    s_add_u32 s{S_U}, s{S_U}, 2
    """)
    for jj in range(8):
        a(f"s_waitcnt lgkmcnt({7-jj})")
        c = "0" if jj == 0 else vr(V_S)
        a(f"v_mfma_f32_16x16x32_bf16 {vr(V_S)}, {vr(V_K+4*jj)}, {vr(V_Q+4*jj)}, {c}")
    a(f"""
    s_add_u32 s{S_SLOT}, s{S_SLOT}, {2*SLOT}
    s_cmp_ge_u32 s{S_SLOT}, {RB+R*SLOT}
    s_cselect_b32 s{S_TMP}, {R*SLOT}, 0
    s_sub_u32 s{S_SLOT}, s{S_SLOT}, s{S_TMP}
    s_nop 1
    s_cmp_ge_i32 s{S_REM}, 16
    s_cbranch_scc1 L_nomask
    v_mov_b32 v{V_T}, {MASKED_RAW:#x}
    v_sub_u32 v{V_T+1}, s{S_REM}, v{V_TOK}
    """)
    for r in range(4):
        a(f"""
        v_cmp_lt_i32 vcc, {r}, v{V_T+1}
        s_nop 1
        v_cndmask_b32 v{V_S+r}, v{V_T}, v{V_S+r}, vcc
        """)
    a(f"""
    L_nomask:
    v_max3_f32 v{V_T}, v{V_S}, v{V_S+1}, v{V_S+2}
    v_max_f32 v{V_T}, v{V_T}, v{V_S+3}
    v_mov_b32 v{V_T+1}, v{V_T}
    s_nop 1
    v_permlane16_swap_b32 v{V_T}, v{V_T+1}
    v_max_f32 v{V_T}, v{V_T}, v{V_T+1}
    v_mov_b32 v{V_T+1}, v{V_T}
    s_nop 1
    v_permlane32_swap_b32 v{V_T}, v{V_T+1}
    v_max_f32 v{V_T}, v{V_T}, v{V_T+1}
    v_mul_f32 v{V_T}, s{S_C}, v{V_T}
    v_max_f32 v{V_T}, v{V_T}, v{V_M}
    v_sub_f32 v{V_ALPHA}, v{V_M}, v{V_T}
    v_mov_b32 v{V_M}, v{V_T}
    v_exp_f32 v{V_ALPHA}, v{V_ALPHA}
    """)
    for r in range(4):
        a(f"v_fma_f32 v{V_S+r}, v{V_S+r}, s{S_C}, -v{V_M}")
    for r in range(4):
        a(f"v_exp_f32 v{V_S+r}, v{V_S+r}")

    def qp(r):
        return "quad_perm:[0,0,2,2] row_mask:0xf bank_mask:0xf" if r % 2 == 0 else "quad_perm:[1,1,3,3] row_mask:0xf bank_mask:0xf"
    for r in range(8):
        a(f"v_mul_f32_dpp v{V_O+r}, v{V_ALPHA}, v{V_O+r} {qp(r)}")
    a(f"""
    v_add_f32 v{V_T}, v{V_S}, v{V_S+1}
    v_add_f32 v{V_T+1}, v{V_S+2}, v{V_S+3}
    v_add_f32 v{V_T}, v{V_T}, v{V_T+1}
    v_fma_f32 v{V_L}, v{V_L}, v{V_ALPHA}, v{V_T}
    """)
    for u in range(4):
        a(f"v_cvt_pk_bf16_f32 v{V_S+u}, v{V_S+u}, v{V_S+u}")
    for u in range(4):
        for j in range(4):
            a(f"v_and_b32 v{V_A+4*u+j}, v{V_S+u}, v{V_MASK+j}")
    a(f"""
    L_c_pv:
    s_cmp_gt_i32 s{S_RDY}, s{S_NEED}
    s_cbranch_scc1 L_c_v
    ds_read_b128 {vr(V_T)}, v{V_RA} offset:{RDY}
    s_waitcnt lgkmcnt(0)
    v_readfirstlane_b32 s{S_RDY}, v{V_T}
    v_readfirstlane_b32 s{S_NKF}, v{V_T+1}
    v_readfirstlane_b32 s{S_MASKU}, v{V_T+2}
    s_branch L_c_pv
    L_c_v:
    """)
    for u in range(4):
        for hf in range(2):
            a(f"ds_read_b128 {vr(V_V+8*u+4*hf)}, v{V_VA} offset:{u*512+hf*256}")
    a(f"v_mov_b32 v{V_T}, s{S_U}")
    a(f"v_add_u32 v{V_T}, -1, v{V_T}")
    k = 0
    for u in range(4):
        for hf in range(2):
            a(f"s_waitcnt lgkmcnt({7-k})")
            if k == 7:
                a(f"ds_write_b32 v{V_CO}, v{V_T} offset:{CONS}")
            a(f"v_mfma_f32_16x16x32_bf16 {vr(V_O+4*hf)}, {vr(V_A+4*u)}, {vr(V_V+8*u+4*hf)}, {vr(V_O+4*hf)}")
            k += 1
    a(f"""
    s_branch L_c_loop
    L_c_done:
    """)
    stamp(3)
    a(f"""
    v_mov_b32 v{V_T+1}, v{V_L}
    v_lshlrev_b32 v{V_T}, 4, v1                 ; lane*16
    v_lshlrev_b32 v{V_T+2}, 3, v1               ; lane*8
    v_permlane16_swap_b32 v{V_L}, v{V_T+1}
    v_add_f32 v{V_L}, v{V_L}, v{V_T+1}
    v_mov_b32 v{V_T+1}, v{V_L}
    s_add_u32 s{S_TMP}, s{S_NKF}, 1
    s_and_b32 s{S_TMP}, s{S_TMP}, 1
    v_permlane32_swap_b32 v{V_L}, v{V_T+1}
    v_add_f32 v{V_L}, v{V_L}, v{V_T+1}
    s_cmp_eq_u32 s{S_TMP}, s{S_W}
    s_cbranch_scc1 L_fin
    ds_write_b128 v{V_T}, {vr(V_O)} offset:{MERGE}
    ds_write_b128 v{V_T}, {vr(V_O+4)} offset:{MERGE+1024}
    ds_write_b64 v{V_T+2}, v[{V_M}:{V_L}] offset:{MERGE+2048}
    s_waitcnt lgkmcnt(0)
    s_barrier
    s_branch L_end
    L_fin:
    s_barrier
    ds_read_b64 v[{V_A}:{V_A+1}], v{V_T+2} offset:{MERGE+2048}
    ds_read_b128 {vr(V_K)}, v{V_T} offset:{MERGE}
    ds_read_b128 {vr(V_K+4)}, v{V_T} offset:{MERGE+1024}
    v_and_b32 v{V_T+2}, 1, v1
    v_lshlrev_b32 v{V_T+2}, 3, v{V_T+2}         ; q*8
    s_waitcnt lgkmcnt(2)
    v_max_f32 v{V_T+1}, v{V_M}, v{V_A}
    v_sub_f32 v{V_ALPHA}, v{V_M}, v{V_T+1}
    v_sub_f32 v{V_A}, v{V_A}, v{V_T+1}
    v_exp_f32 v{V_ALPHA}, v{V_ALPHA}
    v_exp_f32 v{V_A}, v{V_A}
    v_min_u32 v{V_M}, -2, v{V_T+1}
    v_mul_f32 v{V_L}, v{V_L}, v{V_ALPHA}
    v_fmac_f32 v{V_L}, v{V_A}, v{V_A+1}
    """)
    for r in range(8):
        a(f"v_mul_f32_dpp v{V_O+r}, v{V_ALPHA}, v{V_O+r} {qp(r)}")
    a("s_waitcnt lgkmcnt(0)")
    for r in range(8):
        a(f"v_fmac_f32_dpp v{V_O+r}, v{V_A}, v{V_K+r} {qp(r)}")
    a(f"v_min_u32 v{V_L}, -2, v{V_L}")
    for r in range(8):
        a(f"v_min_u32 v{V_O+r}, -2, v{V_O+r}")
    a(f"""
    buffer_store_dwordx4 {vr(V_O)}, v{V_T}, s[{S_WS}:{S_WS+3}], s{S_WSO} offen sc1
    buffer_store_dwordx4 {vr(V_O+4)}, v{V_T}, s[{S_WS}:{S_WS+3}], s{S_WSO} offen offset:1024 sc1
    s_mov_b64 exec, 3
    buffer_store_dwordx2 v[{V_M}:{V_L}], v{V_T+2}, s[{S_WS}:{S_WS+3}], s{S_WSO} offen offset:2048 sc1
    s_mov_b64 exec, -1
    """)
    stamp(4)
    a(f"""
    v_lshrrev_b32 v{V_KA}, 1, v1
    v_mul_u32_u24 v{V_KA}, {WS_SLOT}, v{V_KA}
    v_lshl_add_u32 v{V_VA}, v{V_T+2}, 2, v{V_KA} ; + 32*(l&1)
    s_lshl_b32 s{S_TMP}, s{S_J}, 6
    v_add_u32 v{V_VA}, s{S_TMP}, v{V_VA}
    s_mul_i32 s{S_OFF}, s{S_H}, {32*WS_SLOT}
    s_mov_b32 s{S_NEED}, 0x40000
    L_poll:
    buffer_load_dwordx4 {vr(V_A)}, v{V_KA}, s[{S_WS}:{S_WS+3}], s{S_OFF} offen offset:2048 sc1
    buffer_load_dwordx4 {vr(V_K)}, v{V_VA}, s[{S_WS}:{S_WS+3}], s{S_OFF} offen sc1
    buffer_load_dwordx4 {vr(V_K+4)}, v{V_VA}, s[{S_WS}:{S_WS+3}], s{S_OFF} offen offset:16 sc1
    s_waitcnt vmcnt(2)
    v_max3_u32 v{V_T}, v{V_A}, v{V_A+1}, v{V_A+2}
    s_waitcnt vmcnt(1)
    v_max3_u32 v{V_T}, v{V_T}, v{V_A+3}, v{V_K}
    v_max3_u32 v{V_T}, v{V_T}, v{V_K+1}, v{V_K+2}
    s_waitcnt vmcnt(0)
    v_max3_u32 v{V_T}, v{V_T}, v{V_K+3}, v{V_K+4}
    v_max3_u32 v{V_T}, v{V_T}, v{V_K+5}, v{V_K+6}
    v_max_u32 v{V_T}, v{V_T}, v{V_K+7}
    v_cmp_eq_u32 vcc, -1, v{V_T}
    s_sub_i32 s{S_NEED}, s{S_NEED}, 1
    s_cmp_lt_i32 s{S_NEED}, 0
    s_cselect_b64 exec, 0, vcc
    s_cbranch_execnz L_poll
    s_mov_b64 exec, -1
    """)
    stamp(5)
    M0, L0, M1, L1 = V_A, V_A + 1, V_A + 2, V_A + 3
    X0, X1, T0, T1 = V_A + 4, V_A + 5, V_A + 6, V_A + 7

    def dpp(op, d, s0, s1, ctl):
        a(f"{op}_dpp v{d}, v{s0}, v{s1} {ctl} row_mask:0xf bank_mask:0xf")
    a("s_nop 0")
    dpp("v_max_f32", X0, M0, M0, "row_ror:2")
    dpp("v_max_f32", X1, M1, M1, "row_ror:2")
    for rot in (4, 8):
        a("s_nop 0")
        dpp("v_max_f32", X0, X0, X0, f"row_ror:{rot}")
        dpp("v_max_f32", X1, X1, X1, f"row_ror:{rot}")
    for sw in ("v_permlane16_swap_b32", "v_permlane32_swap_b32"):
        a(f"""
        v_mov_b32 v{T0}, v{X0}
        v_mov_b32 v{T1}, v{X1}
        s_nop 0
        {sw} v{X0}, v{T0}
        {sw} v{X1}, v{T1}
        v_max_f32 v{X0}, v{X0}, v{T0}
        v_max_f32 v{X1}, v{X1}, v{T1}
        """)
    a(f"""
    v_sub_f32 v{M0}, v{M0}, v{X0}
    v_sub_f32 v{M1}, v{M1}, v{X1}
    v_exp_f32 v{M0}, v{M0}
    v_exp_f32 v{M1}, v{M1}
    v_bfe_u32 v{T0}, v1, 4, 1
    v_mul_f32 v{L0}, v{L0}, v{M0}
    v_mul_f32 v{L1}, v{L1}, v{M1}
    """)
    for r in range(8):
        a(f"v_mul_f32 v{V_K+r}, v{V_K+r}, v{(M0, M1)[r & 1]}")
    a(f"""
    v_lshlrev_b32 v{T0}, 9, v{T0}
    v_permlane16_swap_b32 v{L0}, v{L1}
    v_permlane16_swap_b32 v{V_K}, v{V_K+1}
    v_permlane16_swap_b32 v{V_K+2}, v{V_K+3}
    v_permlane16_swap_b32 v{V_K+4}, v{V_K+5}
    v_permlane16_swap_b32 v{V_K+6}, v{V_K+7}
    v_add_f32 v{L0}, v{L0}, v{L1}
    v_add_f32 v{V_K}, v{V_K}, v{V_K+1}
    v_add_f32 v{V_K+2}, v{V_K+2}, v{V_K+3}
    v_add_f32 v{V_K+4}, v{V_K+4}, v{V_K+5}
    v_add_f32 v{V_K+6}, v{V_K+6}, v{V_K+7}
    v_mov_b32 v{L1}, v{L0}
    v_lshrrev_b32 v{T1}, 5, v1                  ; sel
    v_permlane32_swap_b32 v{V_K}, v{V_K+4}
    v_permlane32_swap_b32 v{V_K+2}, v{V_K+6}
    v_permlane32_swap_b32 v{L0}, v{L1}
    v_add_f32 v{V_K}, v{V_K}, v{V_K+4}
    v_add_f32 v{V_K+2}, v{V_K+2}, v{V_K+6}
    v_add_f32 v{L0}, v{L0}, v{L1}
    """)
    for rot in (2, 4, 8):
        dpp("v_add_f32", V_K, V_K, V_K, f"row_ror:{rot}")
        dpp("v_add_f32", V_K + 2, V_K + 2, V_K + 2, f"row_ror:{rot}")
        dpp("v_add_f32", L0, L0, L0, f"row_ror:{rot}")
    a(f"""
    v_lshl_add_u32 v{T0}, v{T1}, 4, v{T0}       ; + sel*16
    v_lshl_add_u32 v{T0}, v{V_T+2}, 2, v{T0}    ; + parity*32
    v_rcp_f32 v{L1}, v{L0}
    s_and_b32 s{S_TMP}, s{S_J}, 3
    s_lshl_b32 s{S_TMP}, s{S_TMP}, 6            ; 4*(j&3)*16
    s_bfe_u32 s{S_T2}, s{S_J}, 0x20002
    s_lshl_b32 s{S_T2}, s{S_T2}, 2              ; g'*4
    s_add_u32 s{S_TMP}, s{S_TMP}, s{S_T2}
    v_fma_f32 v{X0}, -v{L0}, v{L1}, 1.0
    v_fma_f32 v{L1}, v{X0}, v{L1}, v{L1}
    s_lshr_b32 s{S_T2}, s{S_J}, 4
    s_lshl_b32 s{S_T2}, s{S_T2}, 8              ; hf*256
    s_add_u32 s{S_TMP}, s{S_TMP}, s{S_T2}
    s_lshl_b32 s{S_T2}, s{S_H}, 10
    s_add_u32 s{S_TMP}, s{S_TMP}, s{S_T2}
    v_mul_f32 v{V_K}, v{V_K}, v{L1}
    v_mul_f32 v{V_K+2}, v{V_K+2}, v{L1}
    v_cvt_pk_bf16_f32 v{V_K}, v{V_K}, v{V_K+2}
    s_mov_b32 exec_lo, 0x00030003
    s_mov_b32 exec_hi, 0x00030003
    buffer_store_dword v{V_K}, v{T0}, s[{S_OUT}:{S_OUT+3}], s{S_TMP} offen {o.opol}
    """)
    stamp(7)
    a("L_end:")
    if o.stamps:
        a(f"""
        s_waitcnt lgkmcnt(0) vmcnt(0)
        s_mov_b64 exec, -1
        v_lshrrev_b32 v4, 6, v0
        s_nop 0
        v_readfirstlane_b32 s{S_W}, v4
        """)
        srd(S_WS, 18, WS_BYTES)
        a(f"""
        s_getreg_b32 s{ST0+16}, hwreg(HW_REG_XCC_ID)
        s_getreg_b32 s{ST0+17}, hwreg(HW_REG_HW_ID)
        s_mul_i32 s{S_TMP}, s2, 4
        s_add_u32 s{S_TMP}, s{S_TMP}, s{S_W}
        s_lshl_b32 s{S_TMP}, s{S_TMP}, 7
        s_add_u32 s{S_TMP}, s{S_TMP}, {256*WS_SLOT}
        s_mov_b64 exec, 1
        v_mov_b32 v4, 0
        """)
        for i in range(18):
            a(f"v_mov_b32 v5, s{ST0+i}")
            a(f"buffer_store_dword v5, v4, s[{S_WS}:{S_WS+3}], s{S_TMP} offen offset:{4*i}")
            a("s_nop 1")
    a("L_exit:")
    a("s_endpgm")

    out = HEADER + f"; @launch grid=(256,1,1) block=(256,1,1) lds={LDS_BYTES}\n"
    out += f""".amdgcn_target "amdgcn-amd-amdhsa--gfx950"
.text
.globl {NAME}_kernel
.p2align 8
.type {NAME}_kernel,@function
"""
    out += a.text()
    acc = (NV + 3) // 4 * 4
    out += f""".section .rodata,"a"
.p2align 6
.amdhsa_kernel {NAME}_kernel
  .amdhsa_next_free_vgpr {NV}
  .amdhsa_next_free_sgpr 96
  .amdhsa_accum_offset {acc}
  .amdhsa_group_segment_fixed_size 0
  .amdhsa_kernarg_size 64
  .amdhsa_user_sgpr_count 2
  .amdhsa_user_sgpr_kernarg_segment_ptr 1
  .amdhsa_system_sgpr_workgroup_id_x 1
.end_amdhsa_kernel
"""
    return out


if __name__ == "__main__":
    p = argparse.ArgumentParser()
    p.add_argument("-o", default="cdna_kernels/" + NAME + ".s")
    p.add_argument("--w", type=int, default=22)
    p.add_argument("--ring", type=int, default=8)
    p.add_argument("--dyn", type=int, default=10)
    p.add_argument("--la", type=int, default=8)
    p.add_argument("--pf", type=int, default=11)
    p.add_argument("--lp", type=int, default=1)
    p.add_argument("--tstride", type=int, default=256)
    p.add_argument("--opol", default="")
    p.add_argument("--pol", default="nt")
    p.add_argument("--stamps", action="store_true")
    o = p.parse_args()
    open(o.o, "w").write(gen(o))
```

```python
import argparse
from gen import A, vr, HEADER, NAME, KV_BYTES, C_SCALE, NEG_BIG, MASKED_RAW

TICK_OFF = 0x200000
STAMP_OFF = 0x180000
WS_BYTES = TICK_OFF + 64 * 4096
KPAD = 1056
TILE = 8 * KPAD
RDY, CONS, QENT, DT, MERGE, SB = 0, 1024, 1536, 1792, 3328, 5888
RB = SB + 128 * 128
BIG = 0x7fffffff
NEG_RAW = 0xFF61B1E6


def gen(o):
    W, D, LA, LP = o.w, o.dyn, o.la, o.lp
    R = 16
    assert (D + 1) * 32 <= 384 and W <= 32
    pol = (" " + o.pol) if o.pol else ""
    a = A()
    LDS_BYTES = RB + R * TILE
    assert LDS_BYTES <= 163840
    S_X, S_Q, S_WS, S_OUT, S_DBG, S_BT = 20, 28, 32, 36, 40, 44
    S_KB, S_VB = 24, 26
    (S_CL, S_NP, S_S, S_U, S_REM, S_OFF, S_W, S_H, S_J, S_C, S_TMP, S_T2, S_SLOT, S_RDY, S_NEED,
     S_WSO) = range(48, 64)
    ST0 = 64
    S_NKF, S_MASKU, S_REML, S_REMD, S_BART, S_E, S_ND, S_TK, S_G, S_T, S_S2, S_PRE = range(82, 94)
    S_P0 = 96
    S_PH = S_E
    S_WSO2 = S_TK

    def srd(base, ptr, nbytes):
        a(f"""
        s_mov_b32 s{base}, s{ptr}
        s_and_b32 s{base+1}, s{ptr+1}, 0xffff
        s_mov_b32 s{base+2}, {nbytes:#x}
        s_mov_b32 s{base+3}, 0x20000
        """)

    def stamp(i):
        if o.stamps:
            a(f"s_memrealtime s[{ST0+2*i}:{ST0+1+2*i}]")

    def calc_np():
        a(f"""
        s_min_i32 s{S_TMP}, s{S_CL}, 0x10000
        s_add_i32 s{S_NP}, s{S_TMP}, 15
        s_lshr_b32 s{S_NP}, s{S_NP}, 4
        s_cmp_lt_i32 s{S_CL}, 1
        s_cselect_b32 s{S_NP}, 0x1000, s{S_NP}
        s_cselect_b32 s{S_CL}, 0, s{S_TMP}
        """)

    def calc_s():
        a(f"""
        s_lshr_b32 s{S_S}, s{S_NP}, 5
        s_sub_i32 s{S_S}, s{S_S}, {D}
        s_max_i32 s{S_S}, s{S_S}, 0
        """)

    a(f"{NAME}_kernel:")
    if o.stamps:
        for i in range(18):
            a(f"s_mov_b32 s{ST0+i}, 0")
    a(f"""
    s_cmp_ge_u32 s2, 256
    s_cbranch_scc1 L_exit
    s_load_dwordx16 s[4:19], s[0:1], 0
    """)
    stamp(0)
    a(f"""
    v_lshrrev_b32 v4, 6, v0
    v_and_b32 v1, 63, v0
    v_readfirstlane_b32 s{S_W}, v4
    s_lshr_b32 s{S_H}, s2, 5
    s_and_b32 s{S_J}, s2, 31
    s_cmp_lg_u32 s{S_W}, 0
    s_cbranch_scc1 L_other
    """)
    V_BT, V_BT2, V_OK, V_CW, V_FA, V_QI, V_QE, V_TT, V_Z = 2, 3, 8, 16, 18, 19, 20, 21, 22
    V_PUB = 24
    a.c("---------------- loader ----------------")
    a(f"""
    v_lshlrev_b32 v6, 7, v1
    s_lshl_b32 s{S_T2}, s{S_J}, 2
    v_add_u32 v6, s{S_T2}, v6
    s_lshl_b32 s{S_TMP}, s{S_H}, 9
    v_lshrrev_b32 v4, 5, v1
    v_and_b32 v5, 31, v1
    v_xor_b32 v5, v5, v4
    v_lshl_add_u32 v{V_OK}, v5, 4, s{S_TMP}
    v_lshl_add_u32 v{V_OK}, v4, 12, v{V_OK}
    v_add_u32 v7, 0x2000, v6
    """)
    for i in range(1, 8):
        a(f"v_add_u32 v{V_OK+i}, {i*8192 - (i & 3)*KPAD}, v{V_OK}")
    a(f"""
    s_mov_b32 s{S_BT+2}, 16384
    s_mov_b32 s{S_BT+3}, 0x20000
    s_mov_b32 s{S_X+2}, {KV_BYTES:#x}
    s_mov_b32 s{S_X+3}, 0x20000
    v_lshlrev_b32 v{V_FA}, 4, v1
    v_mov_b32 v{V_Z}, 0
    v_mov_b32 v{V_TT}, 0
    v_mov_b32 v{V_CW}, 0
    v_mov_b32 v{V_CW+1}, 0
    v_mov_b32 v{V_PUB}, 0
    v_mov_b32 v{V_PUB+1}, {BIG:#x}
    v_mov_b32 v{V_PUB+2}, -1
    v_mov_b32 v{V_PUB+3}, 0
    s_mov_b32 s{S_T}, 0
    s_mov_b32 s{S_SLOT}, {RB}
    s_waitcnt lgkmcnt(0)
    s_load_dword s{S_CL}, s[12:13], 0
    s_load_dword s{S_P0}, s[10:11], s{S_T2}
    s_load_dword s{S_P0+1}, s[10:11], s{S_T2} offset:128
    s_load_dword s{S_P0+2}, s[10:11], s{S_T2} offset:256
    s_load_dword s{S_P0+3}, s[10:11], s{S_T2} offset:384
    s_mov_b32 s{S_BT}, s10
    s_and_b32 s{S_BT+1}, s11, 0xffff
    buffer_load_dword v{V_BT}, v6, s[{S_BT}:{S_BT+3}], 0 offen
    buffer_load_dword v{V_BT2}, v7, s[{S_BT}:{S_BT+3}], 0 offen
    s_mov_b32 s{S_KB}, s6
    s_and_b32 s{S_KB+1}, s7, 0xffff
    s_mov_b32 s{S_VB}, s8
    s_and_b32 s{S_VB+1}, s9, 0xffff
    ds_write_b128 v{V_FA}, {vr(V_PUB)} offset:{RDY}
    s_waitcnt lgkmcnt(0)
    """)
    calc_np()
    calc_s()
    a(f"""
    s_lshl_b32 s{S_S2}, s{S_S}, 1
    s_and_b32 s{S_TMP}, s{S_S}, 15
    s_lshl_b32 s{S_TMP}, s{S_TMP}, 2
    v_mov_b32 v{V_QI}, s{S_TMP}
    s_cmp_ge_u32 s{S_S}, 4
    s_cselect_b32 s{S_PRE}, 4, 0
    s_cselect_b32 s{S_BART}, 2, 0
    s_cbranch_scc1 L_ld_loop
    s_waitcnt vmcnt(0)
    """)
    a("L_ld_loop:")
    if o.stamps:
        a(f"s_cmp_lg_u32 s{S_T}, 0\ns_cbranch_scc1 L_ns1")
        stamp(1)
        a(f"L_ns1:\ns_cmp_lg_u32 s{S_T}, s{S_S}\ns_cbranch_scc1 L_ns4")
        stamp(4)
        a(f"L_ns4:\ns_cmp_lg_u32 s{S_T}, s{S_S2}\ns_cbranch_scc1 L_ns5")
        stamp(5)
        a("L_ns5:")
    a(f"""
    s_cmp_lg_u32 s{S_T}, s{S_BART}
    s_cbranch_scc1 L_ld_nobar
    s_waitcnt lgkmcnt(0)
    s_barrier
    ds_read_b64 v[{V_CW}:{V_CW+1}], v{V_Z} offset:{CONS}
    ds_read_b32 v{V_QE}, v{V_QI} offset:{QENT}
    L_ld_nobar:
    s_cmp_ge_u32 s{S_T}, s{S_S2}
    s_cbranch_scc1 L_ld_dyn
    s_sub_u32 s{S_U}, s{S_T}, s{S_S}
    s_cselect_b32 s{S_U}, s{S_T}, s{S_U}
    s_cselect_b64 s[{S_X}:{S_X+1}], s[{S_KB}:{S_KB+1}], s[{S_VB}:{S_VB+1}]
    v_readlane_b32 s{S_OFF}, v{V_BT}, s{S_U}
    v_readlane_b32 s{S_T2}, v{V_BT2}, s{S_U}
    s_cmp_ge_u32 s{S_U}, 64
    s_cselect_b32 s{S_OFF}, s{S_T2}, s{S_OFF}
    s_cmp_lt_u32 s{S_T}, s{S_PRE}
    s_cselect_b32 s{S_OFF}, s{S_P0}, s{S_OFF}
    s_mov_b32 s{S_P0}, s{S_P0+1}
    s_mov_b32 s{S_P0+1}, s{S_P0+2}
    s_mov_b32 s{S_P0+2}, s{S_P0+3}
    s_lshl_b32 s{S_OFF}, s{S_OFF}, 16
    L_ld_chk:
    s_waitcnt lgkmcnt(0)
    v_readfirstlane_b32 s{S_TMP}, v{V_CW}
    v_readfirstlane_b32 s{S_RDY}, v{V_CW+1}
    s_mov_b32 m0, s{S_SLOT}
    s_min_u32 s{S_TMP}, s{S_TMP}, s{S_RDY}
    s_add_u32 s{S_TMP}, s{S_TMP}, {R}
    s_cmp_gt_u32 s{S_TMP}, s{S_T}
    s_cbranch_scc0 L_ld_rechk
    """)
    for i in range(8):
        if i == 4:
            a(f"s_add_u32 m0, s{S_SLOT}, {4*KPAD}")
        a(f"s_waitcnt vmcnt({W-1})")
        a(f"buffer_load_dwordx4 v{V_OK+i}, s[{S_X}:{S_X+3}], s{S_OFF} offen offset:{(i & 3)*KPAD}{pol} lds")
        if (i + 1 - W) % 8 == 0:
            a(f"v_add_u32 v4, {(i + 1 - W)//8}, v{V_TT}")
            a(f"v_max_i32 v{V_PUB}, v{V_PUB}, v4")
            a(f"ds_write_b128 v{V_FA}, {vr(V_PUB)} offset:{RDY}")
        if i == o.pf:
            a(f"ds_read_b64 v[{V_CW}:{V_CW+1}], v{V_Z} offset:{CONS}")
            a(f"ds_read_b32 v{V_QE}, v{V_QI} offset:{QENT}")
    a(f"""
    v_add_u32 v{V_TT}, 1, v{V_TT}
    s_add_u32 s{S_SLOT}, s{S_SLOT}, {TILE}
    s_cmp_ge_u32 s{S_SLOT}, {RB+R*TILE}
    s_cselect_b32 s{S_SLOT}, {RB}, s{S_SLOT}
    s_add_u32 s{S_T}, s{S_T}, 1
    s_branch L_ld_loop
    L_ld_rechk:
    ds_read_b64 v[{V_CW}:{V_CW+1}], v{V_Z} offset:{CONS}
    s_branch L_ld_chk
    L_ld_dyn:
    s_bitcmp1_b32 s{S_T}, 0
    s_cselect_b64 s[{S_X}:{S_X+1}], s[{S_VB}:{S_VB+1}], s[{S_KB}:{S_KB+1}]
    s_cbranch_scc1 L_ld_chk
    s_lshr_b32 s{S_U}, s{S_T}, 1
    s_branch L_ld_q
    L_ld_requ:
    {"s_add_u32 s%d, s%d, 1" % (ST0+13, ST0+13) if o.stamps else ""}
    s_getreg_b32 s{S_TMP}, hwreg(HW_REG_IB_STS)
    ds_read_b32 v{V_QE}, v{V_QI} offset:{QENT}
    s_bfe_u32 s{S_T2}, s{S_TMP}, 0x20016
    s_and_b32 s{S_TMP}, s{S_TMP}, 15
    s_lshl4_add_u32 s{S_TMP}, s{S_T2}, s{S_TMP}
    s_add_u32 s{S_TMP}, s{S_TMP}, 7
    s_lshr_b32 s{S_TMP}, s{S_TMP}, 3
    v_subrev_u32 v4, s{S_TMP}, v{V_TT}
    v_max_i32 v{V_PUB}, v{V_PUB}, v4
    ds_write_b128 v{V_FA}, {vr(V_PUB)} offset:{RDY}
    L_ld_q:
    s_add_u32 s{S_T2}, s{S_U}, 1
    s_waitcnt lgkmcnt(0)
    v_readfirstlane_b32 s{S_E}, v{V_QE}
    s_and_b32 s{S_TMP}, s{S_E}, 0x3fff
    s_cmp_lg_u32 s{S_TMP}, s{S_T2}
    s_cbranch_scc1 L_ld_requ
    v_add_u32 v{V_QI}, 4, v{V_QI}
    v_and_b32 v{V_QI}, 63, v{V_QI}
    s_and_b32 s{S_OFF}, s{S_E}, 0xffff0000
    s_bitcmp0_b32 s{S_E}, 15
    s_cbranch_scc1 L_ld_nolast
    v_mov_b32 v{V_PUB+2}, s{S_U}
    L_ld_nolast:
    s_bitcmp0_b32 s{S_E}, 14
    s_cbranch_scc1 L_ld_chk
    v_mov_b32 v{V_PUB+1}, s{S_U}
    """)
    stamp(2)
    for r in range((W - 1) // 8, -1, -1):
        a(f"""
        v_add_u32 v4, {-r}, v{V_TT}
        v_max_i32 v{V_PUB}, v{V_PUB}, v4
        s_waitcnt vmcnt({8*r})
        ds_write_b128 v{V_FA}, {vr(V_PUB)} offset:{RDY}
        """)
    stamp(3)
    if o.stamps:
        a(f"s_mov_b32 s{ST0+12}, s{S_U}")
    a("s_branch L_end")

    a(f"""
    L_other:
    s_cmp_lg_u32 s{S_W}, 3
    s_cbranch_scc1 L_cons
    """)
    a.c("---------------- scheduler ----------------")
    a(f"""
    v_mov_b32 v4, 0
    v_mov_b32 v5, 0
    v_lshlrev_b32 v2, 2, v1
    v_lshlrev_b32 v3, 3, v1
    ds_write_b64 v3, v[4:5] offset:{CONS}
    ds_write_b32 v2, v4 offset:{QENT}
    v_lshlrev_b32 v3, 4, v1
    v_mov_b32 v8, -1
    v_mov_b32 v9, -1
    v_mov_b32 v10, -1
    v_mov_b32 v11, -1
    s_lshl_b32 s{S_WSO}, s2, 12
    s_lshr_b32 s{S_TK}, s2, {5-LP}
    s_lshl_b32 s{S_TK}, s{S_TK}, 8
    s_add_u32 s{S_TK}, s{S_TK}, {TICK_OFF}
    s_lshr_b32 s{S_G}, s{S_J}, {5-LP}
    s_lshl_b32 s{S_T2}, s{S_H}, 5
    s_waitcnt lgkmcnt(0)
    s_load_dword s{S_CL}, s[12:13], 0
    """)
    srd(S_WS, 18, WS_BYTES)
    for k in range(4):
        a(f"buffer_store_dwordx4 v[8:11], v3, s[{S_WS}:{S_WS+3}], s{S_WSO} offen offset:{1024*k} sc1")
    a(f"""
    s_mov_b64 exec, 1
    s_and_b32 s{S_TMP}, s{S_J}, {(32 >> LP) - 1}
    s_cbranch_scc1 L_s_nozero
    buffer_store_dword v4, v4, s[{S_WS}:{S_WS+3}], s{S_TK} offen sc1
    L_s_nozero:
    s_mov_b64 exec, -1
    s_barrier
    """)
    srd(S_DBG, 16, 256)
    srd(S_BT, 10, 16384)
    a("s_waitcnt lgkmcnt(0)")
    calc_np()
    calc_s()
    a(f"""
    s_lshl_b32 s{S_TMP}, s{S_S}, 5
    s_sub_u32 s{S_ND}, s{S_NP}, s{S_TMP}
    s_lshl_b32 s{S_TMP}, s{S_TMP}, 2
    """)
    NDT = ((D + 1) * 32 + 63) // 64
    for i in range(NDT):
        a(f"buffer_load_dword v{12+i}, v2, s[{S_BT}:{S_BT+3}], s{S_TMP} offen offset:{256*i}")
    a(f"""
    v_mov_b32 v6, 1
    s_waitcnt vmcnt(0)
    s_mov_b64 exec, 1
    buffer_atomic_add v6, v4, s[{S_DBG}:{S_DBG+3}], s{S_T2} offen
    s_mov_b64 exec, -1
    """)
    for i in range(NDT):
        a(f"ds_write_b32 v2, v{12+i} offset:{DT+256*i}")
    a(f"""
    s_mov_b64 exec, 1
    s_mov_b32 s{S_U}, s{S_S}
    s_lshl_b32 s{S_NEED}, s{S_U}, 1
    s_sub_i32 s{S_NEED}, s{S_NEED}, {LA}
    s_sub_i32 s{S_T2}, s{S_NEED}, 8
    L_s_far:
    ds_read_b32 v7, v4 offset:{RDY}
    s_waitcnt lgkmcnt(0)
    v_readfirstlane_b32 s{S_RDY}, v7
    s_cmp_ge_i32 s{S_RDY}, s{S_T2}
    s_cbranch_scc1 L_s_near
    s_sleep 8
    s_branch L_s_far
    L_s_near:
    s_lshl_b32 s{S_T2}, s{S_H}, 5
    s_mov_b32 s{S_OFF}, 0x40000
    L_s_cnt:
    buffer_load_dword v7, v4, s[{S_DBG}:{S_DBG+3}], s{S_T2} offen sc1
    s_waitcnt vmcnt(0)
    v_readfirstlane_b32 s{S_TMP}, v7
    s_sub_u32 s{S_OFF}, s{S_OFF}, 1
    s_cbranch_scc1 L_s_again
    s_cmp_lt_u32 s{S_TMP}, 32
    s_cbranch_scc1 L_s_cnt
    """)

    def request(v):
        a(f"""
        s_add_i32 s{S_NEED}, s{S_NEED}, 2
        v_mov_b32 v{v}, 1
        buffer_atomic_add v{v}, v4, s[{S_WS}:{S_WS+3}], s{S_TK} offen sc0
        """)

    def ticket(v):
        a(f"""
        v_readfirstlane_b32 s{S_TMP}, v{v}
        s_min_u32 s{S_TMP}, s{S_TMP}, 0x10000
        s_lshl_b32 s{S_TMP}, s{S_TMP}, {LP}
        s_add_u32 s{S_TMP}, s{S_TMP}, s{S_G}
        s_add_u32 s{S_OFF}, s{S_TMP}, {o.xf}
        s_cmp_ge_u32 s{S_TMP}, s{S_ND}
        """)

    def emit():
        a(f"""
        s_lshl_b32 s{S_T2}, s{S_TMP}, 2
        v_mov_b32 v12, s{S_T2}
        ds_read_b32 v13, v12 offset:{DT}
        s_add_u32 s{S_TMP}, s{S_TMP}, 1
        s_cmp_eq_u32 s{S_TMP}, s{S_ND}
        s_cselect_b32 s{S_TMP}, 0x8000, 0
        s_and_b32 s{S_T2}, s{S_U}, 15
        s_lshl_b32 s{S_T2}, s{S_T2}, 2
        s_add_u32 s{S_U}, s{S_U}, 1
        s_or_b32 s{S_TMP}, s{S_TMP}, s{S_U}
        v_mov_b32 v12, s{S_T2}
        s_waitcnt lgkmcnt(0)
        v_lshl_or_b32 v13, v13, 16, s{S_TMP}
        ds_write_b32 v12, v13 offset:{QENT}
        s_cmp_ge_u32 s{S_OFF}, s{S_ND}
        """)
    a(f"""
    L_s_again:
    s_cmp_ge_i32 s{S_RDY}, s{S_NEED}
    s_cbranch_scc1 L_s_go
    ds_read_b32 v7, v4 offset:{RDY}
    s_waitcnt lgkmcnt(0)
    v_readfirstlane_b32 s{S_RDY}, v7
    s_branch L_s_again
    L_s_go:
    """)
    request(20)
    for ph in range(2):
        cur, nxt = (20, 21) if ph == 0 else (21, 20)
        a(f"""
        L_s_p{ph}:
        s_cmp_ge_i32 s{S_RDY}, s{S_NEED}
        s_cbranch_scc1 L_s_two{ph}
        ds_read_b32 v7, v4 offset:{RDY}
        s_getreg_b32 s{S_TMP}, hwreg(HW_REG_IB_STS, 0, 4)
        s_waitcnt lgkmcnt(0)
        v_readfirstlane_b32 s{S_RDY}, v7
        s_cmp_lg_u32 s{S_TMP}, 0
        s_cbranch_scc1 L_s_p{ph}
        s_waitcnt vmcnt(0)
        """)
        ticket(cur)
        a("s_cbranch_scc1 L_s_fin")
        emit()
        a(f"""
        s_cbranch_scc1 L_s_fin
        s_branch L_s_again
        L_s_two{ph}:
        """)
        request(nxt)
        a("s_waitcnt vmcnt(1)")
        ticket(cur)
        a(f"s_cbranch_scc1 L_s_end{ph}")
        emit()
        a(f"s_cbranch_scc1 L_s_end{ph}")
    a(f"""
    s_branch L_s_p0
    L_s_end0:
    s_waitcnt vmcnt(0)
    v_mov_b32 v20, v21
    L_s_end1:
    s_waitcnt vmcnt(0)
    """)
    ticket(20)
    a("s_cbranch_scc1 L_s_fin")
    emit()
    a(f"""
    L_s_fin:
    s_and_b32 s{S_T2}, s{S_U}, 15
    s_lshl_b32 s{S_T2}, s{S_T2}, 2
    s_add_u32 s{S_U}, s{S_U}, 1
    s_or_b32 s{S_TMP}, s{S_U}, 0x4000
    v_mov_b32 v12, s{S_T2}
    v_mov_b32 v13, s{S_TMP}
    ds_write_b32 v12, v13 offset:{QENT}
    s_branch L_end
    """)

    V_KB, V_VE, V_KA, V_VA, V_RA, V_CO = 2, 3, 4, 5, 6, 7
    V_MASK, V_M, V_L, V_TOK, V_ALPHA, V_S, V_T, V_O, V_A, V_Q, V_K, V_V = 8, 12, 13, 14, 15, 16, 20, 24, 32, 48, 80, 112
    V_P, V_CV, V_VO, V_VA2, V_SBB, V_SA, V_MR = 144, 148, 149, 150, 151, 152, 153
    NV = 154
    a.c("---------------- consumers ----------------")
    a(f"""
    L_cons:
    s_sub_u32 s{S_W}, s{S_W}, 1
    v_and_b32 v{V_T+1}, 15, v0                  ; n / m
    v_bfe_u32 v{V_T+2}, v0, 4, 2                ; g
    ; Q: lane (g,n): (2h + (n&1))*512 + g*16
    v_and_b32 v{V_S}, 1, v0
    v_lshlrev_b32 v{V_S+1}, 9, v{V_S}
    v_lshl_add_u32 v{V_S+1}, v{V_T+2}, 4, v{V_S+1}
    s_lshl_b32 s{S_TMP}, s{S_H}, 10
    s_waitcnt lgkmcnt(0)
    s_load_dword s{S_CL}, s[12:13], 0
    """)
    srd(S_Q, 4, 8192)
    for jj in range(8):
        a(f"buffer_load_dwordx4 {vr(V_Q+4*jj)}, v{V_S+1}, s[{S_Q}:{S_Q+3}], s{S_TMP} offen offset:{jj*64}")
    srd(S_WS, 18, WS_BYTES)
    srd(S_OUT, 14, 8192)
    a(f"""
    s_lshl_b32 s{S_WSO}, s{S_H}, 17
    s_lshl_b32 s{S_T2}, s{S_J}, 7
    s_add_u32 s{S_WSO}, s{S_WSO}, s{S_T2}
    s_add_u32 s{S_WSO2}, s{S_WSO}, 0x10000
    s_mov_b32 s{S_C}, {C_SCALE:#x}
    v_lshrrev_b32 v{V_KB}, 1, v{V_T+1}
    v_mul_u32_u24 v{V_KB}, {KPAD}, v{V_KB}
    v_lshl_add_u32 v{V_KB}, v{V_S}, 9, v{V_KB}
    v_xor_b32 v{V_S+2}, v{V_T+2}, v{V_S}
    v_lshl_add_u32 v{V_KB}, v{V_S+2}, 4, v{V_KB}
    v_mul_u32_u24 v{V_VE}, {2*KPAD}, v{V_T+2}
    v_xor_b32 v{V_S+2}, 1, v{V_T+1}
    v_lshl_add_u32 v{V_VO}, v{V_S+2}, 4, v{V_VE}
    v_add_u32 v{V_VO}, 512, v{V_VO}
    v_lshl_add_u32 v{V_VE}, v{V_T+1}, 4, v{V_VE}
    v_lshlrev_b32 v{V_SBB}, 5, v{V_T+2}
    v_lshl_add_u32 v{V_SBB}, v{V_S}, 4, v{V_SBB}
    v_mov_b32 v{V_RA}, 0
    s_lshl_b32 s{S_TMP}, s{S_W}, 2
    v_lshl_add_u32 v{V_CO}, v1, 3, s{S_TMP}
    v_lshlrev_b32 v{V_TOK}, 2, v{V_T+2}         ; 4g
    v_bfe_u32 v{V_S+2}, v0, 1, 1
    v_lshlrev_b32 v{V_S+2}, 4, v{V_S+2}
    v_mov_b32 v{V_S+3}, 0xffff
    v_lshlrev_b32 v{V_S+3}, v{V_S+2}, v{V_S+3}
    v_bfe_u32 v{V_S+2}, v0, 2, 2
    """)
    for j in range(4):
        a(f"""
        v_cmp_eq_u32 vcc, {j}, v{V_S+2}
        s_nop 1
        v_cndmask_b32 v{V_MASK+j}, 0, v{V_S+3}, vcc
        """)
    a(f"""
    v_mov_b32 v{V_M}, {NEG_BIG:#x}
    v_mov_b32 v{V_MR}, {NEG_RAW:#x}
    v_mov_b32 v{V_L}, 0
    """)
    for r in range(8):
        a(f"v_mov_b32 v{V_O+r}, 0")
    a("s_barrier")
    a("s_waitcnt lgkmcnt(0)")
    calc_np()
    a(f"""
    s_cselect_b32 s{S_REMD}, 0, 16
    s_lshl_b32 s{S_TMP}, s{S_NP}, 4
    s_sub_i32 s{S_REML}, s{S_CL}, s{S_TMP}
    s_add_i32 s{S_REML}, s{S_REML}, 16
    """)
    calc_s()

    def slot_of(t):
        a(f"""
        s_and_b32 s{S_SLOT}, s{t}, {R-1}
        s_mul_i32 s{S_SLOT}, s{S_SLOT}, {TILE}
        s_add_u32 s{S_SLOT}, s{S_SLOT}, {RB}
        """)

    def refresh():
        a(f"""
        v_readfirstlane_b32 s{S_RDY}, v{V_T}
        v_readfirstlane_b32 s{S_NKF}, v{V_T+1}
        v_readfirstlane_b32 s{S_MASKU}, v{V_T+2}
        """)

    def qp(r):
        return "quad_perm:[0,0,2,2] row_mask:0xf bank_mask:0xf" if r % 2 == 0 else "quad_perm:[1,1,3,3] row_mask:0xf bank_mask:0xf"

    a(f"""
    s_mov_b32 s{S_U}, s{S_W}
    s_mov_b32 s{S_RDY}, 0
    s_mov_b32 s{S_NKF}, {BIG:#x}
    s_mov_b32 s{S_MASKU}, -1
    s_cmp_lt_u32 s{S_U}, s{S_S}
    s_cselect_b32 s{S_PH}, 1, 3
    s_lshl_b32 s{S_T}, s{S_U}, 1
    s_cmp_lt_u32 s{S_U}, s{S_S}
    s_cselect_b32 s{S_T}, s{S_U}, s{S_T}
    s_waitcnt vmcnt(0)
    L_c_kloop:
    """)
    slot_of(S_T)
    a(f"""
    v_add_u32 v{V_KA}, s{S_SLOT}, v{V_KB}
    L_c_pk:
    s_cmp_gt_i32 s{S_RDY}, s{S_T}
    s_cbranch_scc1 L_c_k
    s_cmp_ge_u32 s{S_U}, s{S_NKF}
    s_cbranch_scc1 L_c_done
    ds_read_b128 {vr(V_T)}, v{V_RA} offset:{RDY}
    s_waitcnt lgkmcnt(0)
    """)
    refresh()
    a(f"""
    s_branch L_c_pk
    L_c_k:
    """)
    for jj in range(8):
        a(f"ds_read_b128 {vr(V_K+4*jj)}, v{V_KA} offset:{jj*64}")
    a(f"""
    s_cmp_eq_u32 s{S_U}, s{S_MASKU}
    s_cselect_b32 s{S_REM}, s{S_REML}, s{S_REMD}
    s_lshl_b32 s{S_TMP}, s{S_U}, 7
    v_add_u32 v{V_SA}, s{S_TMP}, v{V_SBB}
    s_add_u32 s{S_T2}, s{S_T}, 2
    s_add_u32 s{S_TMP}, s{S_S}, s{S_W}
    s_cmp_lt_u32 s{S_T2}, s{S_S}
    s_cselect_b32 s{S_T2}, s{S_T2}, s{S_TMP}
    s_add_u32 s{S_T}, s{S_T}, 1
    s_cmp_eq_u32 s{S_PH}, 1
    s_cselect_b32 s{S_T}, s{S_T2}, s{S_T}
    v_mov_b32 v{V_CV}, s{S_T}
    """)
    for jj in range(8):
        a(f"s_waitcnt lgkmcnt({7-jj})")
        if jj == 7:
            a(f"ds_write_b32 v{V_CO}, v{V_CV} offset:{CONS}")
        c = "0" if jj == 0 else vr(V_S)
        a(f"v_mfma_f32_16x16x32_bf16 {vr(V_S)}, {vr(V_K+4*jj)}, {vr(V_Q+4*jj)}, {c}")
    a(f"ds_read_b128 {vr(V_T)}, v{V_RA} offset:{RDY}")
    slot_of(S_T)
    a(f"""
    v_add_u32 v{V_VA}, s{S_SLOT}, v{V_VE}
    v_add_u32 v{V_VA2}, s{S_SLOT}, v{V_VO}
    s_cmp_ge_i32 s{S_REM}, 16
    s_cbranch_scc1 L_nomask
    v_mov_b32 v{V_P}, {MASKED_RAW:#x}
    v_sub_u32 v{V_P+1}, s{S_REM}, v{V_TOK}
    """)
    for r in range(4):
        a(f"""
        v_cmp_lt_i32 vcc, {r}, v{V_P+1}
        s_nop 1
        v_cndmask_b32 v{V_S+r}, v{V_P}, v{V_S+r}, vcc
        """)
    a(f"""
    L_nomask:
    v_max3_f32 v{V_MR}, v{V_MR}, v{V_S}, v{V_S+1}
    v_max3_f32 v{V_MR}, v{V_MR}, v{V_S+2}, v{V_S+3}
    s_waitcnt lgkmcnt(0)
    """)
    refresh()
    a(f"""
    s_cmp_lg_u32 s{S_PH}, 1
    s_cbranch_scc1 L_c_resc
    s_mov_b32 exec_lo, 0x00030003
    s_mov_b32 exec_hi, 0x00030003
    ds_write_b128 v{V_SA}, {vr(V_S)} offset:{SB}
    s_mov_b64 exec, -1
    s_add_u32 s{S_U}, s{S_U}, 2
    s_cmp_lt_u32 s{S_U}, s{S_S}
    s_cbranch_scc1 L_c_kloop
    s_mov_b32 s{S_U}, s{S_W}
    s_mov_b32 s{S_PH}, 2
    L_c_resc:
    v_mov_b32 v{V_T}, v{V_MR}
    s_nop 1
    v_permlane16_swap_b32 v{V_MR}, v{V_T}
    v_max_f32 v{V_MR}, v{V_MR}, v{V_T}
    v_mov_b32 v{V_T}, v{V_MR}
    s_nop 1
    v_permlane32_swap_b32 v{V_MR}, v{V_T}
    v_max_f32 v{V_MR}, v{V_MR}, v{V_T}
    v_mul_f32 v{V_T}, s{S_C}, v{V_MR}
    v_sub_f32 v{V_ALPHA}, v{V_M}, v{V_T}
    v_exp_f32 v{V_ALPHA}, v{V_ALPHA}
    v_mov_b32 v{V_M}, v{V_T}
    s_nop 0
    v_mul_f32 v{V_L}, v{V_L}, v{V_ALPHA}
    """)
    for r in range(8):
        a(f"v_mul_f32_dpp v{V_O+r}, v{V_ALPHA}, v{V_O+r} {qp(r)}")
    a(f"""
    s_cmp_eq_u32 s{S_PH}, 3
    s_cbranch_scc1 L_c_vs
    L_c_vloop:
    s_lshl_b32 s{S_TMP}, s{S_U}, 7
    v_add_u32 v{V_SA}, s{S_TMP}, v{V_SBB}
    ds_read_b128 {vr(V_S)}, v{V_SA} offset:{SB}
    """)
    slot_of(S_T)
    a(f"""
    v_add_u32 v{V_VA}, s{S_SLOT}, v{V_VE}
    v_add_u32 v{V_VA2}, s{S_SLOT}, v{V_VO}
    s_waitcnt lgkmcnt(0)
    L_c_vs:
    """)

    def vreads():
        for u in range(4):
            for hf in range(2):
                a(f"ds_read_b128 {vr(V_V+8*u+4*hf)}, v{(V_VA, V_VA2)[u & 1]} offset:{(u >> 1)*KPAD+hf*256}")

    def build(u):
        a(f"v_cvt_pk_bf16_f32 v{V_P+u}, v{V_S+u}, v{V_S+u}")
        for j in range(4):
            a(f"v_and_b32 v{V_A+4*u+j}, v{V_P+u}, v{V_MASK+j}")
    a(f"""
    s_mov_b32 s{S_NEED}, s{S_T}
    s_cmp_gt_i32 s{S_RDY}, s{S_NEED}
    s_cbranch_scc0 L_c_vlate
    """)
    vreads()
    a("L_c_vlate:")
    for r in range(4):
        a(f"v_fma_f32 v{V_S+r}, v{V_S+r}, s{S_C}, -v{V_M}")
    for r in range(4):
        a(f"v_exp_f32 v{V_S+r}, v{V_S+r}")
    a(f"""
    s_add_u32 s{S_U}, s{S_U}, 2
    s_add_u32 s{S_T}, s{S_T}, 2
    s_lshl_b32 s{S_TMP}, s{S_U}, 1
    s_cmp_lt_u32 s{S_U}, s{S_S}
    s_cselect_b32 s{S_T}, s{S_T}, s{S_TMP}
    s_cselect_b32 s{S_PH}, 2, 3
    v_mov_b32 v{V_CV}, s{S_T}
    """)
    build(0)
    a(f"""
    s_cmp_gt_i32 s{S_RDY}, s{S_NEED}
    s_cbranch_scc1 L_c_v
    """)
    build(1); build(2); build(3)
    a(f"""
    L_c_pv:
    ds_read_b128 {vr(V_T)}, v{V_RA} offset:{RDY}
    s_waitcnt lgkmcnt(0)
    """)
    refresh()
    a(f"""
    s_cmp_gt_i32 s{S_RDY}, s{S_NEED}
    s_cbranch_scc0 L_c_pv
    """)
    vreads()
    a("L_c_v:")
    k = 0
    for u in range(4):
        for hf in range(2):
            a(f"s_waitcnt lgkmcnt({7-k})")
            if k == 7:
                a(f"ds_write_b32 v{V_CO}, v{V_CV} offset:{CONS}")
            a(f"v_mfma_f32_16x16x32_bf16 {vr(V_O+4*hf)}, {vr(V_A+4*u)}, {vr(V_V+8*u+4*hf)}, {vr(V_O+4*hf)}")
            if hf == 0 and u < 3:
                build(u + 1)
            k += 1
    a(f"""
    v_add_f32 v{V_T}, v{V_S}, v{V_S+1}
    v_add_f32 v{V_T+1}, v{V_S+2}, v{V_S+3}
    v_add_f32 v{V_L}, v{V_L}, v{V_T}
    v_add_f32 v{V_L}, v{V_L}, v{V_T+1}
    s_cmp_eq_u32 s{S_PH}, 2
    s_cbranch_scc1 L_c_vloop
    s_branch L_c_kloop
    L_c_done:
    """)
    stamp(3)
    G = V_Q
    S_PEND = 4
    ML = V_A + 4
    a(f"""
    v_mov_b32 v{V_T+1}, v{V_L}
    v_lshlrev_b32 v{V_T}, 4, v1                 ; lane*16
    v_lshlrev_b32 v{V_T+2}, 3, v1               ; lane*8
    v_permlane16_swap_b32 v{V_L}, v{V_T+1}
    v_add_f32 v{V_L}, v{V_L}, v{V_T+1}
    v_mov_b32 v{V_T+1}, v{V_L}
    s_add_u32 s{S_TMP}, s{S_NKF}, 1
    s_and_b32 s{S_TMP}, s{S_TMP}, 1
    v_permlane32_swap_b32 v{V_L}, v{V_T+1}
    v_add_f32 v{V_L}, v{V_L}, v{V_T+1}
    s_cmp_eq_u32 s{S_TMP}, s{S_W}
    s_cbranch_scc1 L_fin
    ds_write_b128 v{V_T}, {vr(V_O)} offset:{MERGE}
    ds_write_b128 v{V_T}, {vr(V_O+4)} offset:{MERGE+1024}
    ds_write_b64 v{V_T+2}, v[{V_M}:{V_L}] offset:{MERGE+2048}
    s_waitcnt lgkmcnt(0)
    s_barrier
    s_branch L_end
    L_fin:
    s_barrier
    ds_read_b64 v[{V_A}:{V_A+1}], v{V_T+2} offset:{MERGE+2048}
    ds_read_b128 {vr(V_K)}, v{V_T} offset:{MERGE}
    ds_read_b128 {vr(V_K+4)}, v{V_T} offset:{MERGE+1024}
    v_lshrrev_b32 v{V_KA}, 2, v1
    v_lshlrev_b32 v{V_KA}, 12, v{V_KA}
    v_and_b32 v{V_T+2}, 3, v1
    v_lshl_add_u32 v{V_KA}, v{V_T+2}, 4, v{V_KA}
    s_waitcnt lgkmcnt(2)
    v_max_f32 v{V_T+1}, v{V_M}, v{V_A}
    v_sub_f32 v{V_ALPHA}, v{V_M}, v{V_T+1}
    v_sub_f32 v{V_A}, v{V_A}, v{V_T+1}
    v_exp_f32 v{V_ALPHA}, v{V_ALPHA}
    v_exp_f32 v{V_A}, v{V_A}
    v_min_u32 v{V_M}, -2, v{V_T+1}
    v_mul_f32 v{V_L}, v{V_L}, v{V_ALPHA}
    v_fmac_f32 v{V_L}, v{V_A}, v{V_A+1}
    v_min_u32 v{V_L}, -2, v{V_L}
    """)
    for r in range(8):
        a(f"v_mul_f32_dpp v{V_O+r}, v{V_ALPHA}, v{V_O+r} {qp(r)}")
    a(f"""
    v_mov_b32_dpp v{ML}, v{V_M} {qp(0)}
    v_mov_b32_dpp v{ML+1}, v{V_L} {qp(0)}
    v_mov_b32_dpp v{ML+2}, v{V_M} {qp(1)}
    v_mov_b32_dpp v{ML+3}, v{V_L} {qp(1)}
    buffer_store_dwordx4 {vr(ML)}, v{V_KA}, s[{S_WS}:{S_WS+3}], s{S_WSO} offen offset:64 sc1
    buffer_store_dwordx4 {vr(ML)}, v{V_KA}, s[{S_WS}:{S_WS+3}], s{S_WSO2} offen offset:64 sc1
    s_waitcnt lgkmcnt(0)
    """)
    for hf in range(2):
        for r in range(4 * hf, 4 * hf + 4):
            a(f"v_fmac_f32_dpp v{V_O+r}, v{V_A}, v{V_K+r} {qp(r)}")
        for r in range(4 * hf, 4 * hf + 4):
            a(f"v_min_u32 v{V_O+r}, -2, v{V_O+r}")
        a(f"buffer_store_dwordx4 {vr(V_O+4*hf)}, v{V_KA}, s[{S_WS}:{S_WS+3}], s{(S_WSO, S_WSO2)[hf]} offen sc1")
    stamp(4)
    a(f"""
    s_lshl_b32 s{S_OFF}, s2, 12
    s_mov_b32 s{S_NEED}, 0x40000
    """)
    for k in range(4):
        a(f"s_mov_b64 s[{S_PEND+2*k}:{S_PEND+2*k+1}], -1")

    def issue():
        for k in range(4):
            a(f"s_or_b64 exec, s[{S_PEND+2*k}:{S_PEND+2*k+1}], 1")
            a(f"buffer_load_dwordx4 {vr(G+4*k)}, v{V_T}, s[{S_WS}:{S_WS+3}], s{S_OFF} offen offset:{1024*k} sc1")
    issue()
    OA = V_VA
    a(f"""
    v_bfe_u32 v{OA}, v1, 4, 1
    v_lshlrev_b32 v{OA}, 9, v{OA}               ; q*512
    v_lshl_add_u32 v{OA}, v{V_T+2}, 4, v{OA}    ; + c*16
    s_and_b32 s{S_TMP}, s{S_J}, 3
    s_lshl_b32 s{S_TMP}, s{S_TMP}, 6
    s_bfe_u32 s{S_T2}, s{S_J}, 0x20002
    s_lshl_b32 s{S_T2}, s{S_T2}, 2
    s_add_u32 s{S_TMP}, s{S_TMP}, s{S_T2}
    s_lshr_b32 s{S_T2}, s{S_J}, 4
    s_lshl_b32 s{S_T2}, s{S_T2}, 8
    s_add_u32 s{S_TMP}, s{S_TMP}, s{S_T2}
    s_lshl_b32 s{S_T2}, s{S_H}, 10
    s_add_u32 s{S_TMP}, s{S_TMP}, s{S_T2}
    L_poll:
    s_mov_b64 exec, -1
    """)
    for k in range(4):
        b = G + 4 * k
        a(f"""
        s_waitcnt vmcnt({3 - k})
        v_max3_u32 v{V_S+k}, v{b}, v{b+1}, v{b+2}
        v_max_u32 v{V_S+k}, v{V_S+k}, v{b+3}
        v_cmp_eq_u32 s[{S_PEND+2*k}:{S_PEND+2*k+1}], -1, v{V_S+k}
        """)
    a(f"""
    s_or_b64 vcc, s[{S_PEND}:{S_PEND+1}], s[{S_PEND+2}:{S_PEND+3}]
    s_or_b64 s[12:13], s[{S_PEND+4}:{S_PEND+5}], s[{S_PEND+6}:{S_PEND+7}]
    s_or_b64 vcc, vcc, s[12:13]
    s_cbranch_scc0 L_got
    """)
    issue()
    a(f"""
    s_sub_u32 s{S_NEED}, s{S_NEED}, 1
    s_cbranch_scc0 L_poll
    s_waitcnt vmcnt(0)
    s_mov_b64 exec, -1
    L_got:
    """)
    stamp(5)
    X0, X1, T0, T1 = V_K, V_K + 1, V_K + 2, V_K + 3
    WT = V_K + 8
    AC = V_K + 16
    L0, L1 = V_K + 20, V_K + 21

    def dpp(op, d, s0, s1, ctl):
        a(f"{op}_dpp v{d}, v{s0}, v{s1} {ctl} row_mask:0xf bank_mask:0xf")
    a(f"""
    v_max3_f32 v{X0}, v{G}, v{G+4}, v{G+8}
    v_max3_f32 v{X1}, v{G+2}, v{G+6}, v{G+10}
    v_max_f32 v{X0}, v{X0}, v{G+12}
    v_max_f32 v{X1}, v{X1}, v{G+14}
    s_nop 0
    """)
    dpp("v_max_f32", X0, X0, X0, "row_ror:8")
    dpp("v_max_f32", X1, X1, X1, "row_ror:8")
    for sw in ("v_permlane16_swap_b32", "v_permlane32_swap_b32"):
        a(f"""
        v_mov_b32 v{T0}, v{X0}
        v_mov_b32 v{T1}, v{X1}
        s_nop 0
        {sw} v{X0}, v{T0}
        {sw} v{X1}, v{T1}
        v_max_f32 v{X0}, v{X0}, v{T0}
        v_max_f32 v{X1}, v{X1}, v{T1}
        """)
    for k in range(4):
        for q in range(2):
            a(f"v_sub_f32 v{WT+2*k+q}, v{G+4*k+2*q}, v{(X0, X1)[q]}")
    for k in range(4):
        for q in range(2):
            a(f"v_exp_f32 v{WT+2*k+q}, v{WT+2*k+q}")
    for k in range(4):
        op = "v_mul_f32" if k == 0 else "v_fmac_f32"
        for q in range(2):
            a(f"{op} v{(L0, L1)[q]}, v{WT+2*k+q}, v{G+4*k+2*q+1}")
        for r in range(4):
            dpp(op, AC + r, WT + 2 * k + (r & 1), G + 4 * k + r, "row_ror:12")
    a(f"""
    s_nop 0
    v_permlane16_swap_b32 v{L0}, v{L1}
    v_permlane16_swap_b32 v{AC}, v{AC+1}
    v_permlane16_swap_b32 v{AC+2}, v{AC+3}
    v_add_f32 v{L0}, v{L0}, v{L1}
    v_add_f32 v{AC}, v{AC}, v{AC+1}
    v_add_f32 v{AC+2}, v{AC+2}, v{AC+3}
    v_mov_b32 v{L1}, v{L0}
    v_mov_b32 v{AC+1}, v{AC}
    v_mov_b32 v{AC+3}, v{AC+2}
    v_permlane32_swap_b32 v{L0}, v{L1}
    v_permlane32_swap_b32 v{AC}, v{AC+1}
    v_permlane32_swap_b32 v{AC+2}, v{AC+3}
    v_add_f32 v{L0}, v{L0}, v{L1}
    v_add_f32 v{AC}, v{AC}, v{AC+1}
    v_add_f32 v{AC+2}, v{AC+2}, v{AC+3}
    """)
    dpp("v_add_f32", L0, L0, L0, "row_ror:8")
    dpp("v_add_f32", AC, AC, AC, "row_ror:8")
    dpp("v_add_f32", AC + 2, AC + 2, AC + 2, "row_ror:8")
    a(f"""
    v_rcp_f32 v{L1}, v{L0}
    s_nop 0
    v_fma_f32 v{X0}, -v{L0}, v{L1}, 1.0
    v_fma_f32 v{L1}, v{X0}, v{L1}, v{L1}
    s_nop 1
    """)
    dpp("v_mul_f32", AC, L1, AC, "row_ror:12")
    dpp("v_mul_f32", AC + 2, L1, AC + 2, "row_ror:12")
    a(f"""
    s_mov_b64 exec, 0x000f000f
    v_cvt_pk_bf16_f32 v{AC}, v{AC}, v{AC+2}
    buffer_store_dword v{AC}, v{OA}, s[{S_OUT}:{S_OUT+3}], s{S_TMP} offen
    """)
    stamp(7)
    a("L_end:")
    if o.stamps:
        a(f"""
        s_waitcnt lgkmcnt(0) vmcnt(0)
        s_mov_b64 exec, -1
        v_lshrrev_b32 v4, 6, v0
        s_nop 0
        v_readfirstlane_b32 s{S_W}, v4
        """)
        srd(S_WS, 18, WS_BYTES)
        a(f"""
        s_getreg_b32 s{ST0+16}, hwreg(HW_REG_XCC_ID)
        s_getreg_b32 s{ST0+17}, hwreg(HW_REG_HW_ID)
        s_mul_i32 s{S_TMP}, s2, 4
        s_add_u32 s{S_TMP}, s{S_TMP}, s{S_W}
        s_lshl_b32 s{S_TMP}, s{S_TMP}, 7
        s_add_u32 s{S_TMP}, s{S_TMP}, {STAMP_OFF}
        s_mov_b64 exec, 1
        v_mov_b32 v4, 0
        """)
        for i in range(18):
            a(f"v_mov_b32 v5, s{ST0+i}")
            a(f"buffer_store_dword v5, v4, s[{S_WS}:{S_WS+3}], s{S_TMP} offen offset:{4*i}")
            a("s_nop 1")
    a("L_exit:")
    a("s_endpgm")

    out = HEADER + f"; @launch grid=(256,1,1) block=(256,1,1) lds={LDS_BYTES}\n"
    out += f""".amdgcn_target "amdgcn-amd-amdhsa--gfx950"
.text
.globl {NAME}_kernel
.p2align 8
.type {NAME}_kernel,@function
"""
    out += a.text()
    acc = (NV + 3) // 4 * 4
    out += f""".section .rodata,"a"
.p2align 6
.amdhsa_kernel {NAME}_kernel
  .amdhsa_next_free_vgpr {NV}
  .amdhsa_next_free_sgpr 100
  .amdhsa_accum_offset {acc}
  .amdhsa_group_segment_fixed_size 0
  .amdhsa_kernarg_size 64
  .amdhsa_user_sgpr_count 2
  .amdhsa_user_sgpr_kernarg_segment_ptr 1
  .amdhsa_system_sgpr_workgroup_id_x 1
.end_amdhsa_kernel
"""
    return out


if __name__ == "__main__":
    p = argparse.ArgumentParser()
    p.add_argument("-o", default="cdna_kernels/" + NAME + ".s")
    p.add_argument("--w", type=int, default=22)
    p.add_argument("--dyn", type=int, default=5)
    p.add_argument("--la", type=int, default=8)
    p.add_argument("--pf", type=int, default=3)
    p.add_argument("--lp", type=int, default=1)
    p.add_argument("--xf", type=int, default=32)
    p.add_argument("--pol", default="nt")
    p.add_argument("--stamps", action="store_true")
    o = p.parse_args()
    open(o.o, "w").write(gen(o))
```

```python
import argparse
from gen import A, vr, HEADER, NAME, KV_BYTES, C_SCALE, NEG_BIG, MASKED_RAW

TICK_OFF = 0x200000
STAMP_OFF = 0x180000
WS_BYTES = TICK_OFF + 64 * 4096
KPAD = 1056
TILE = 8 * KPAD
RDY, CONS, QENT, DT, MERGE, SB = 0, 1024, 1536, 1792, 3328, 5888
RB = SB + 128 * 128
BIG = 0x7fffffff
NEG_RAW = 0xFF61B1E6


def gen(o):
    W, D, LA, LP = o.w, o.dyn, o.la, o.lp
    R = 16
    assert (D + 1) * 32 <= 384 and W <= 32
    pol = (" " + o.pol) if o.pol else ""
    a = A()
    LDS_BYTES = RB + R * TILE
    assert LDS_BYTES <= 163840
    S_X, S_Q, S_WS, S_OUT, S_DBG, S_BT = 20, 28, 32, 36, 40, 44
    S_KB, S_VB = 24, 26
    (S_CL, S_NP, S_S, S_U, S_REM, S_OFF, S_W, S_H, S_J, S_C, S_TMP, S_T2, S_SLOT, S_RDY, S_NEED,
     S_WSO) = range(48, 64)
    ST0 = 64
    S_NKF, S_MASKU, S_REML, S_REMD, S_BART, S_E, S_ND, S_TK, S_G, S_T, S_S2, S_PRE = range(82, 94)
    S_P0 = 96
    S_PH = S_E
    S_WSO2 = S_TK

    def srd(base, ptr, nbytes):
        a(f"""
        s_mov_b32 s{base}, s{ptr}
        s_and_b32 s{base+1}, s{ptr+1}, 0xffff
        s_mov_b32 s{base+2}, {nbytes:#x}
        s_mov_b32 s{base+3}, 0x20000
        """)

    def stamp(i):
        if o.stamps:
            a(f"s_memrealtime s[{ST0+2*i}:{ST0+1+2*i}]")

    def calc_np():
        a(f"""
        s_min_i32 s{S_TMP}, s{S_CL}, 0x10000
        s_add_i32 s{S_NP}, s{S_TMP}, 15
        s_lshr_b32 s{S_NP}, s{S_NP}, 4
        s_cmp_lt_i32 s{S_CL}, 1
        s_cselect_b32 s{S_NP}, 0x1000, s{S_NP}
        s_cselect_b32 s{S_CL}, 0, s{S_TMP}
        """)

    def calc_s():
        a(f"""
        s_lshr_b32 s{S_S}, s{S_NP}, 5
        s_sub_i32 s{S_S}, s{S_S}, {D}
        s_max_i32 s{S_S}, s{S_S}, 0
        """)

    a(f"{NAME}_kernel:")
    if o.stamps:
        for i in range(18):
            a(f"s_mov_b32 s{ST0+i}, 0")
    a(f"""
    s_cmp_ge_u32 s2, 256
    s_cbranch_scc1 L_exit
    s_load_dwordx16 s[4:19], s[0:1], 0
    """)
    stamp(0)
    if o.probe:
        a("s_memrealtime s[64:65]")
    a(f"""
    v_lshrrev_b32 v4, 6, v0
    v_and_b32 v1, 63, v0
    v_readfirstlane_b32 s{S_W}, v4
    s_lshr_b32 s{S_H}, s2, 5
    s_and_b32 s{S_J}, s2, 31
    s_cmp_lg_u32 s{S_W}, 0
    s_cbranch_scc1 L_other
    """)
    V_BT, V_BT2, V_OK, V_CW, V_FA, V_QI, V_QE, V_TT, V_Z = 2, 3, 8, 16, 18, 19, 20, 21, 22
    V_PUB = 24
    a.c("---------------- loader ----------------")
    a(f"""
    v_lshlrev_b32 v6, 7, v1
    s_lshl_b32 s{S_T2}, s{S_J}, 2
    v_add_u32 v6, s{S_T2}, v6
    s_lshl_b32 s{S_TMP}, s{S_H}, 9
    v_lshrrev_b32 v4, 5, v1
    v_and_b32 v5, 31, v1
    v_xor_b32 v5, v5, v4
    v_lshl_add_u32 v{V_OK}, v5, 4, s{S_TMP}
    v_lshl_add_u32 v{V_OK}, v4, 12, v{V_OK}
    v_add_u32 v7, 0x2000, v6
    """)
    for i in range(1, 8):
        a(f"v_add_u32 v{V_OK+i}, {i*8192 - (i & 3)*KPAD}, v{V_OK}")
    a(f"""
    s_mov_b32 s{S_BT+2}, 16384
    s_mov_b32 s{S_BT+3}, 0x20000
    s_mov_b32 s{S_X+2}, {KV_BYTES:#x}
    s_mov_b32 s{S_X+3}, 0x20000
    v_lshlrev_b32 v{V_FA}, 4, v1
    v_mov_b32 v{V_Z}, 0
    v_mov_b32 v{V_TT}, 0
    v_mov_b32 v{V_CW}, 0
    v_mov_b32 v{V_CW+1}, 0
    v_mov_b32 v{V_PUB}, 0
    v_mov_b32 v{V_PUB+1}, {BIG:#x}
    v_mov_b32 v{V_PUB+2}, -1
    v_mov_b32 v{V_PUB+3}, 0
    s_mov_b32 s{S_T}, 0
    s_mov_b32 s{S_SLOT}, {RB}
    s_waitcnt lgkmcnt(0)
    s_load_dword s{S_CL}, s[12:13], 0
    s_load_dword s{S_P0}, s[10:11], s{S_T2}
    s_load_dword s{S_P0+1}, s[10:11], s{S_T2} offset:128
    s_load_dword s{S_P0+2}, s[10:11], s{S_T2} offset:256
    s_load_dword s{S_P0+3}, s[10:11], s{S_T2} offset:384
    s_mov_b32 s{S_BT}, s10
    s_and_b32 s{S_BT+1}, s11, 0xffff
    buffer_load_dword v{V_BT}, v6, s[{S_BT}:{S_BT+3}], 0 offen
    buffer_load_dword v{V_BT2}, v7, s[{S_BT}:{S_BT+3}], 0 offen
    s_mov_b32 s{S_KB}, s6
    s_and_b32 s{S_KB+1}, s7, 0xffff
    s_mov_b32 s{S_VB}, s8
    s_and_b32 s{S_VB+1}, s9, 0xffff
    ds_write_b128 v{V_FA}, {vr(V_PUB)} offset:{RDY}
    s_waitcnt lgkmcnt(0)
    """)
    calc_np()
    calc_s()
    a(f"""
    s_lshl_b32 s{S_S2}, s{S_S}, 1
    s_and_b32 s{S_TMP}, s{S_S}, 15
    s_lshl_b32 s{S_TMP}, s{S_TMP}, 2
    v_mov_b32 v{V_QI}, s{S_TMP}
    s_cmp_ge_u32 s{S_S}, 4
    s_cselect_b32 s{S_PRE}, 4, 0
    s_cselect_b32 s{S_BART}, 2, 0
    s_cbranch_scc1 L_ld_loop
    s_waitcnt vmcnt(0)
    """)
    a("L_ld_loop:")
    if o.stamps:
        a(f"s_cmp_lg_u32 s{S_T}, 0\ns_cbranch_scc1 L_ns1")
        stamp(1)
        a(f"L_ns1:\ns_cmp_lg_u32 s{S_T}, s{S_S}\ns_cbranch_scc1 L_ns4")
        stamp(4)
        a(f"L_ns4:\ns_cmp_lg_u32 s{S_T}, s{S_S2}\ns_cbranch_scc1 L_ns5")
        stamp(5)
        a("L_ns5:")
    a(f"""
    s_cmp_lg_u32 s{S_T}, s{S_BART}
    s_cbranch_scc1 L_ld_nobar
    s_waitcnt lgkmcnt(0)
    s_barrier
    ds_read_b64 v[{V_CW}:{V_CW+1}], v{V_Z} offset:{CONS}
    ds_read_b32 v{V_QE}, v{V_QI} offset:{QENT}
    L_ld_nobar:
    s_cmp_ge_u32 s{S_T}, s{S_S2}
    s_cbranch_scc1 L_ld_dyn
    s_sub_u32 s{S_U}, s{S_T}, s{S_S}
    s_cselect_b32 s{S_U}, s{S_T}, s{S_U}
    s_cselect_b64 s[{S_X}:{S_X+1}], s[{S_KB}:{S_KB+1}], s[{S_VB}:{S_VB+1}]
    v_readlane_b32 s{S_OFF}, v{V_BT}, s{S_U}
    v_readlane_b32 s{S_T2}, v{V_BT2}, s{S_U}
    s_cmp_ge_u32 s{S_U}, 64
    s_cselect_b32 s{S_OFF}, s{S_T2}, s{S_OFF}
    s_cmp_lt_u32 s{S_T}, s{S_PRE}
    s_cselect_b32 s{S_OFF}, s{S_P0}, s{S_OFF}
    s_mov_b32 s{S_P0}, s{S_P0+1}
    s_mov_b32 s{S_P0+1}, s{S_P0+2}
    s_mov_b32 s{S_P0+2}, s{S_P0+3}
    s_lshl_b32 s{S_OFF}, s{S_OFF}, 16
    L_ld_chk:
    s_waitcnt lgkmcnt(0)
    v_readfirstlane_b32 s{S_TMP}, v{V_CW}
    v_readfirstlane_b32 s{S_RDY}, v{V_CW+1}
    s_mov_b32 m0, s{S_SLOT}
    s_min_u32 s{S_TMP}, s{S_TMP}, s{S_RDY}
    s_add_u32 s{S_TMP}, s{S_TMP}, {R}
    s_cmp_gt_u32 s{S_TMP}, s{S_T}
    s_cbranch_scc0 L_ld_rechk
    """)
    for i in range(8):
        if i == 4:
            a(f"s_add_u32 m0, s{S_SLOT}, {4*KPAD}")
        a(f"s_waitcnt vmcnt({W-1})")
        a(f"buffer_load_dwordx4 v{V_OK+i}, s[{S_X}:{S_X+3}], s{S_OFF} offen offset:{(i & 3)*KPAD}{pol} lds")
        if (i + 1 - W) % 8 == 0:
            a(f"v_add_u32 v4, {(i + 1 - W)//8}, v{V_TT}")
            a(f"v_max_i32 v{V_PUB}, v{V_PUB}, v4")
            a(f"ds_write_b128 v{V_FA}, {vr(V_PUB)} offset:{RDY}")
        if i == o.pf:
            a(f"ds_read_b64 v[{V_CW}:{V_CW+1}], v{V_Z} offset:{CONS}")
            a(f"ds_read_b32 v{V_QE}, v{V_QI} offset:{QENT}")
    a(f"""
    v_add_u32 v{V_TT}, 1, v{V_TT}
    s_add_u32 s{S_SLOT}, s{S_SLOT}, {TILE}
    s_cmp_ge_u32 s{S_SLOT}, {RB+R*TILE}
    s_cselect_b32 s{S_SLOT}, {RB}, s{S_SLOT}
    s_add_u32 s{S_T}, s{S_T}, 1
    s_branch L_ld_loop
    L_ld_rechk:
    ds_read_b64 v[{V_CW}:{V_CW+1}], v{V_Z} offset:{CONS}
    s_branch L_ld_chk
    L_ld_dyn:
    s_bitcmp1_b32 s{S_T}, 0
    s_cselect_b64 s[{S_X}:{S_X+1}], s[{S_VB}:{S_VB+1}], s[{S_KB}:{S_KB+1}]
    s_cbranch_scc1 L_ld_chk
    s_lshr_b32 s{S_U}, s{S_T}, 1
    s_branch L_ld_q
    L_ld_requ:
    {"s_add_u32 s%d, s%d, 1" % (ST0+13, ST0+13) if o.stamps else ""}
    s_getreg_b32 s{S_TMP}, hwreg(HW_REG_IB_STS)
    ds_read_b32 v{V_QE}, v{V_QI} offset:{QENT}
    s_bfe_u32 s{S_T2}, s{S_TMP}, 0x20016
    s_and_b32 s{S_TMP}, s{S_TMP}, 15
    s_lshl4_add_u32 s{S_TMP}, s{S_T2}, s{S_TMP}
    s_add_u32 s{S_TMP}, s{S_TMP}, 7
    s_lshr_b32 s{S_TMP}, s{S_TMP}, 3
    v_subrev_u32 v4, s{S_TMP}, v{V_TT}
    v_max_i32 v{V_PUB}, v{V_PUB}, v4
    ds_write_b128 v{V_FA}, {vr(V_PUB)} offset:{RDY}
    L_ld_q:
    s_add_u32 s{S_T2}, s{S_U}, 1
    s_waitcnt lgkmcnt(0)
    v_readfirstlane_b32 s{S_E}, v{V_QE}
    s_and_b32 s{S_TMP}, s{S_E}, 0x3fff
    s_cmp_lg_u32 s{S_TMP}, s{S_T2}
    s_cbranch_scc1 L_ld_requ
    v_add_u32 v{V_QI}, 4, v{V_QI}
    v_and_b32 v{V_QI}, 63, v{V_QI}
    s_and_b32 s{S_OFF}, s{S_E}, 0xffff0000
    s_bitcmp0_b32 s{S_E}, 15
    s_cbranch_scc1 L_ld_nolast
    v_mov_b32 v{V_PUB+2}, s{S_U}
    L_ld_nolast:
    s_bitcmp0_b32 s{S_E}, 14
    s_cbranch_scc1 L_ld_chk
    v_mov_b32 v{V_PUB+1}, s{S_U}
    """)
    stamp(2)
    for r in range((W - 1) // 8, -1, -1):
        a(f"""
        v_add_u32 v4, {-r}, v{V_TT}
        v_max_i32 v{V_PUB}, v{V_PUB}, v4
        s_waitcnt vmcnt({8*r})
        ds_write_b128 v{V_FA}, {vr(V_PUB)} offset:{RDY}
        """)
    stamp(3)
    if o.stamps:
        a(f"s_mov_b32 s{ST0+12}, s{S_U}")
    a("s_branch L_end")

    a(f"""
    L_other:
    s_cmp_lg_u32 s{S_W}, 3
    s_cbranch_scc1 L_cons
    """)
    a.c("---------------- scheduler ----------------")
    a(f"""
    v_mov_b32 v4, 0
    v_mov_b32 v5, 0
    v_lshlrev_b32 v2, 2, v1
    v_lshlrev_b32 v3, 3, v1
    ds_write_b64 v3, v[4:5] offset:{CONS}
    ds_write_b32 v2, v4 offset:{QENT}
    v_lshlrev_b32 v3, 4, v1
    v_mov_b32 v8, -1
    v_mov_b32 v9, -1
    v_mov_b32 v10, -1
    v_mov_b32 v11, -1
    s_lshl_b32 s{S_WSO}, s2, 12
    s_lshr_b32 s{S_TK}, s2, {5-LP}
    s_lshl_b32 s{S_TK}, s{S_TK}, 8
    s_add_u32 s{S_TK}, s{S_TK}, {TICK_OFF}
    s_lshr_b32 s{S_G}, s{S_J}, {5-LP}
    s_lshl_b32 s{S_T2}, s{S_H}, 5
    s_waitcnt lgkmcnt(0)
    s_load_dword s{S_CL}, s[12:13], 0
    """)
    srd(S_WS, 18, WS_BYTES)
    for k in range(4):
        a(f"buffer_store_dwordx4 v[8:11], v3, s[{S_WS}:{S_WS+3}], s{S_WSO} offen offset:{1024*k} sc1")
    a(f"""
    s_mov_b64 exec, 1
    s_and_b32 s{S_TMP}, s{S_J}, {(32 >> LP) - 1}
    s_cbranch_scc1 L_s_nozero
    buffer_store_dword v4, v4, s[{S_WS}:{S_WS+3}], s{S_TK} offen sc1
    L_s_nozero:
    s_mov_b64 exec, -1
    s_barrier
    """)
    srd(S_DBG, 16, 256)
    srd(S_BT, 10, 16384)
    a("s_waitcnt lgkmcnt(0)")
    calc_np()
    calc_s()
    a(f"""
    s_lshl_b32 s{S_TMP}, s{S_S}, 5
    s_sub_u32 s{S_ND}, s{S_NP}, s{S_TMP}
    s_lshl_b32 s{S_TMP}, s{S_TMP}, 2
    """)
    NDT = ((D + 1) * 32 + 63) // 64
    for i in range(NDT):
        a(f"buffer_load_dword v{12+i}, v2, s[{S_BT}:{S_BT+3}], s{S_TMP} offen offset:{256*i}")
    a(f"""
    v_mov_b32 v6, 1
    s_waitcnt vmcnt(0)
    s_mov_b64 exec, 1
    buffer_atomic_add v6, v4, s[{S_DBG}:{S_DBG+3}], s{S_T2} offen
    s_mov_b64 exec, -1
    """)
    for i in range(NDT):
        a(f"ds_write_b32 v2, v{12+i} offset:{DT+256*i}")
    a(f"""
    s_mov_b64 exec, 1
    s_mov_b32 s{S_U}, s{S_S}
    s_lshl_b32 s{S_NEED}, s{S_U}, 1
    s_sub_i32 s{S_NEED}, s{S_NEED}, {LA}
    s_sub_i32 s{S_T2}, s{S_NEED}, 8
    L_s_far:
    ds_read_b32 v7, v4 offset:{RDY}
    s_waitcnt lgkmcnt(0)
    v_readfirstlane_b32 s{S_RDY}, v7
    s_cmp_ge_i32 s{S_RDY}, s{S_T2}
    s_cbranch_scc1 L_s_near
    s_sleep 8
    s_branch L_s_far
    L_s_near:
    s_lshl_b32 s{S_T2}, s{S_H}, 5
    s_mov_b32 s{S_OFF}, 0x40000
    L_s_cnt:
    buffer_load_dword v7, v4, s[{S_DBG}:{S_DBG+3}], s{S_T2} offen sc1
    s_waitcnt vmcnt(0)
    v_readfirstlane_b32 s{S_TMP}, v7
    s_sub_u32 s{S_OFF}, s{S_OFF}, 1
    s_cbranch_scc1 L_s_again
    s_cmp_lt_u32 s{S_TMP}, 32
    s_cbranch_scc1 L_s_cnt
    """)

    def request(v):
        a(f"""
        s_add_i32 s{S_NEED}, s{S_NEED}, 2
        v_mov_b32 v{v}, 1
        buffer_atomic_add v{v}, v4, s[{S_WS}:{S_WS+3}], s{S_TK} offen sc0
        """)

    def ticket(v):
        a(f"""
        v_readfirstlane_b32 s{S_TMP}, v{v}
        s_min_u32 s{S_TMP}, s{S_TMP}, 0x10000
        s_lshl_b32 s{S_TMP}, s{S_TMP}, {LP}
        s_add_u32 s{S_TMP}, s{S_TMP}, s{S_G}
        s_add_u32 s{S_OFF}, s{S_TMP}, {o.xf}
        s_cmp_ge_u32 s{S_TMP}, s{S_ND}
        """)

    def emit():
        a(f"""
        s_lshl_b32 s{S_T2}, s{S_TMP}, 2
        v_mov_b32 v12, s{S_T2}
        ds_read_b32 v13, v12 offset:{DT}
        s_add_u32 s{S_TMP}, s{S_TMP}, 1
        s_cmp_eq_u32 s{S_TMP}, s{S_ND}
        s_cselect_b32 s{S_TMP}, 0x8000, 0
        s_and_b32 s{S_T2}, s{S_U}, 15
        s_lshl_b32 s{S_T2}, s{S_T2}, 2
        s_add_u32 s{S_U}, s{S_U}, 1
        s_or_b32 s{S_TMP}, s{S_TMP}, s{S_U}
        v_mov_b32 v12, s{S_T2}
        s_waitcnt lgkmcnt(0)
        v_lshl_or_b32 v13, v13, 16, s{S_TMP}
        ds_write_b32 v12, v13 offset:{QENT}
        s_cmp_ge_u32 s{S_OFF}, s{S_ND}
        """)
    a(f"""
    L_s_again:
    s_cmp_ge_i32 s{S_RDY}, s{S_NEED}
    s_cbranch_scc1 L_s_go
    ds_read_b32 v7, v4 offset:{RDY}
    s_waitcnt lgkmcnt(0)
    v_readfirstlane_b32 s{S_RDY}, v7
    s_branch L_s_again
    L_s_go:
    """)
    request(20)
    for ph in range(2):
        cur, nxt = (20, 21) if ph == 0 else (21, 20)
        a(f"""
        L_s_p{ph}:
        s_cmp_ge_i32 s{S_RDY}, s{S_NEED}
        s_cbranch_scc1 L_s_two{ph}
        ds_read_b32 v7, v4 offset:{RDY}
        s_getreg_b32 s{S_TMP}, hwreg(HW_REG_IB_STS, 0, 4)
        s_waitcnt lgkmcnt(0)
        v_readfirstlane_b32 s{S_RDY}, v7
        s_cmp_lg_u32 s{S_TMP}, 0
        s_cbranch_scc1 L_s_p{ph}
        s_waitcnt vmcnt(0)
        """)
        ticket(cur)
        a("s_cbranch_scc1 L_s_fin")
        emit()
        a(f"""
        s_cbranch_scc1 L_s_fin
        s_branch L_s_again
        L_s_two{ph}:
        """)
        request(nxt)
        a("s_waitcnt vmcnt(1)")
        ticket(cur)
        a(f"s_cbranch_scc1 L_s_end{ph}")
        emit()
        a(f"s_cbranch_scc1 L_s_end{ph}")
    a(f"""
    s_branch L_s_p0
    L_s_end0:
    s_waitcnt vmcnt(0)
    v_mov_b32 v20, v21
    L_s_end1:
    s_waitcnt vmcnt(0)
    """)
    ticket(20)
    a("s_cbranch_scc1 L_s_fin")
    emit()
    a(f"""
    L_s_fin:
    s_and_b32 s{S_T2}, s{S_U}, 15
    s_lshl_b32 s{S_T2}, s{S_T2}, 2
    s_add_u32 s{S_U}, s{S_U}, 1
    s_or_b32 s{S_TMP}, s{S_U}, 0x4000
    v_mov_b32 v12, s{S_T2}
    v_mov_b32 v13, s{S_TMP}
    ds_write_b32 v12, v13 offset:{QENT}
    s_branch L_end
    """)

    V_KB, V_VE, V_KA, V_VA, V_RA, V_CO = 2, 3, 4, 5, 6, 7
    V_MASK, V_M, V_L, V_TOK, V_ALPHA, V_S, V_T, V_O, V_A, V_Q, V_K, V_V = 8, 12, 13, 14, 15, 16, 20, 24, 32, 48, 80, 112
    V_P, V_CV, V_VO, V_VA2, V_SBB, V_SA, V_MR = 144, 148, 149, 150, 151, 152, 153
    NV = 154
    a.c("---------------- consumers ----------------")
    a(f"""
    L_cons:
    s_sub_u32 s{S_W}, s{S_W}, 1
    v_and_b32 v{V_T+1}, 15, v0                  ; n / m
    v_bfe_u32 v{V_T+2}, v0, 4, 2                ; g
    ; Q: lane (g,n): (2h + (n&1))*512 + g*16
    v_and_b32 v{V_S}, 1, v0
    v_lshlrev_b32 v{V_S+1}, 9, v{V_S}
    v_lshl_add_u32 v{V_S+1}, v{V_T+2}, 4, v{V_S+1}
    s_lshl_b32 s{S_TMP}, s{S_H}, 10
    s_waitcnt lgkmcnt(0)
    s_load_dword s{S_CL}, s[12:13], 0
    """)
    srd(S_Q, 4, 8192)
    for jj in range(8):
        a(f"buffer_load_dwordx4 {vr(V_Q+4*jj)}, v{V_S+1}, s[{S_Q}:{S_Q+3}], s{S_TMP} offen offset:{jj*64}")
    srd(S_WS, 18, WS_BYTES)
    srd(S_OUT, 14, 8192)
    a(f"""
    s_lshl_b32 s{S_WSO}, s{S_H}, 17
    s_lshl_b32 s{S_T2}, s{S_J}, 7
    s_add_u32 s{S_WSO}, s{S_WSO}, s{S_T2}
    s_add_u32 s{S_WSO2}, s{S_WSO}, 0x10000
    s_mov_b32 s{S_C}, {C_SCALE:#x}
    v_lshrrev_b32 v{V_KB}, 1, v{V_T+1}
    v_mul_u32_u24 v{V_KB}, {KPAD}, v{V_KB}
    v_lshl_add_u32 v{V_KB}, v{V_S}, 9, v{V_KB}
    v_xor_b32 v{V_S+2}, v{V_T+2}, v{V_S}
    v_lshl_add_u32 v{V_KB}, v{V_S+2}, 4, v{V_KB}
    v_mul_u32_u24 v{V_VE}, {2*KPAD}, v{V_T+2}
    v_xor_b32 v{V_S+2}, 1, v{V_T+1}
    v_lshl_add_u32 v{V_VO}, v{V_S+2}, 4, v{V_VE}
    v_add_u32 v{V_VO}, 512, v{V_VO}
    v_lshl_add_u32 v{V_VE}, v{V_T+1}, 4, v{V_VE}
    v_lshlrev_b32 v{V_SBB}, 5, v{V_T+2}
    v_lshl_add_u32 v{V_SBB}, v{V_S}, 4, v{V_SBB}
    v_mov_b32 v{V_RA}, 0
    s_lshl_b32 s{S_TMP}, s{S_W}, 2
    v_lshl_add_u32 v{V_CO}, v1, 3, s{S_TMP}
    v_lshlrev_b32 v{V_TOK}, 2, v{V_T+2}         ; 4g
    v_bfe_u32 v{V_S+2}, v0, 1, 1
    v_lshlrev_b32 v{V_S+2}, 4, v{V_S+2}
    v_mov_b32 v{V_S+3}, 0xffff
    v_lshlrev_b32 v{V_S+3}, v{V_S+2}, v{V_S+3}
    v_bfe_u32 v{V_S+2}, v0, 2, 2
    """)
    for j in range(4):
        a(f"""
        v_cmp_eq_u32 vcc, {j}, v{V_S+2}
        s_nop 1
        v_cndmask_b32 v{V_MASK+j}, 0, v{V_S+3}, vcc
        """)
    a(f"""
    v_mov_b32 v{V_M}, {NEG_BIG:#x}
    v_mov_b32 v{V_MR}, {NEG_RAW:#x}
    v_mov_b32 v{V_L}, 0
    """)
    for r in range(8):
        a(f"v_mov_b32 v{V_O+r}, 0")
    a("s_barrier")
    a("s_waitcnt lgkmcnt(0)")
    calc_np()
    a(f"""
    s_cselect_b32 s{S_REMD}, 0, 16
    s_lshl_b32 s{S_TMP}, s{S_NP}, 4
    s_sub_i32 s{S_REML}, s{S_CL}, s{S_TMP}
    s_add_i32 s{S_REML}, s{S_REML}, 16
    """)
    calc_s()

    def slot_of(t):
        a(f"""
        s_and_b32 s{S_SLOT}, s{t}, {R-1}
        s_mul_i32 s{S_SLOT}, s{S_SLOT}, {TILE}
        s_add_u32 s{S_SLOT}, s{S_SLOT}, {RB}
        """)

    def refresh():
        a(f"""
        v_readfirstlane_b32 s{S_RDY}, v{V_T}
        v_readfirstlane_b32 s{S_NKF}, v{V_T+1}
        v_readfirstlane_b32 s{S_MASKU}, v{V_T+2}
        """)

    def qp(r):
        return "quad_perm:[0,0,2,2] row_mask:0xf bank_mask:0xf" if r % 2 == 0 else "quad_perm:[1,1,3,3] row_mask:0xf bank_mask:0xf"

    a(f"""
    s_mov_b32 s{S_U}, s{S_W}
    s_mov_b32 s{S_RDY}, 0
    s_mov_b32 s{S_NKF}, {BIG:#x}
    s_mov_b32 s{S_MASKU}, -1
    s_cmp_lt_u32 s{S_U}, s{S_S}
    s_cselect_b32 s{S_PH}, 1, 3
    s_lshl_b32 s{S_T}, s{S_U}, 1
    s_cmp_lt_u32 s{S_U}, s{S_S}
    s_cselect_b32 s{S_T}, s{S_U}, s{S_T}
    s_waitcnt vmcnt(0)
    L_c_kloop:
    """)
    slot_of(S_T)
    a(f"""
    v_add_u32 v{V_KA}, s{S_SLOT}, v{V_KB}
    L_c_pk:
    s_cmp_gt_i32 s{S_RDY}, s{S_T}
    s_cbranch_scc1 L_c_k
    s_cmp_ge_u32 s{S_U}, s{S_NKF}
    s_cbranch_scc1 L_c_done
    ds_read_b128 {vr(V_T)}, v{V_RA} offset:{RDY}
    s_waitcnt lgkmcnt(0)
    """)
    refresh()
    a(f"""
    s_branch L_c_pk
    L_c_k:
    """)
    if o.probe == 2:
        a(f"""
        s_cmp_ge_u32 s{S_U}, 2
        s_cbranch_scc1 L_pr2
        s_memrealtime s[72:73]
        s_waitcnt lgkmcnt(0)
        L_pr2:
        """)
    for jj in range(8):
        a(f"ds_read_b128 {vr(V_K+4*jj)}, v{V_KA} offset:{jj*64}")
    a(f"""
    s_cmp_eq_u32 s{S_U}, s{S_MASKU}
    s_cselect_b32 s{S_REM}, s{S_REML}, s{S_REMD}
    s_lshl_b32 s{S_TMP}, s{S_U}, 7
    v_add_u32 v{V_SA}, s{S_TMP}, v{V_SBB}
    s_add_u32 s{S_T2}, s{S_T}, 2
    s_add_u32 s{S_TMP}, s{S_S}, s{S_W}
    s_cmp_lt_u32 s{S_T2}, s{S_S}
    s_cselect_b32 s{S_T2}, s{S_T2}, s{S_TMP}
    s_add_u32 s{S_T}, s{S_T}, 1
    s_cmp_eq_u32 s{S_PH}, 1
    s_cselect_b32 s{S_T}, s{S_T2}, s{S_T}
    v_mov_b32 v{V_CV}, s{S_T}
    """)
    for jj in range(8):
        a(f"s_waitcnt lgkmcnt({7-jj})")
        if jj == 7:
            a(f"ds_write_b32 v{V_CO}, v{V_CV} offset:{CONS}")
        c = "0" if jj == 0 else vr(V_S)
        a(f"v_mfma_f32_16x16x32_bf16 {vr(V_S)}, {vr(V_K+4*jj)}, {vr(V_Q+4*jj)}, {c}")
    a(f"ds_read_b128 {vr(V_T)}, v{V_RA} offset:{RDY}")
    slot_of(S_T)
    a(f"""
    v_add_u32 v{V_VA}, s{S_SLOT}, v{V_VE}
    v_add_u32 v{V_VA2}, s{S_SLOT}, v{V_VO}
    s_cmp_ge_i32 s{S_REM}, 16
    s_cbranch_scc1 L_nomask
    v_mov_b32 v{V_P}, {MASKED_RAW:#x}
    v_sub_u32 v{V_P+1}, s{S_REM}, v{V_TOK}
    """)
    for r in range(4):
        a(f"""
        v_cmp_lt_i32 vcc, {r}, v{V_P+1}
        s_nop 1
        v_cndmask_b32 v{V_S+r}, v{V_P}, v{V_S+r}, vcc
        """)
    a(f"""
    L_nomask:
    v_max3_f32 v{V_MR}, v{V_MR}, v{V_S}, v{V_S+1}
    v_max3_f32 v{V_MR}, v{V_MR}, v{V_S+2}, v{V_S+3}
    s_waitcnt lgkmcnt(0)
    """)
    refresh()
    a(f"""
    s_cmp_lg_u32 s{S_PH}, 1
    s_cbranch_scc1 L_c_resc
    s_mov_b32 exec_lo, 0x00030003
    s_mov_b32 exec_hi, 0x00030003
    ds_write_b128 v{V_SA}, {vr(V_S)} offset:{SB}
    s_mov_b64 exec, -1
    s_add_u32 s{S_U}, s{S_U}, 2
    s_cmp_lt_u32 s{S_U}, s{S_S}
    s_cbranch_scc1 L_c_kloop
    s_mov_b32 s{S_U}, s{S_W}
    s_mov_b32 s{S_PH}, 2
    {"s_memrealtime s[72:73]" if o.probe == 3 else ""}
    {"s_waitcnt lgkmcnt(0)" if o.probe == 3 else ""}
    L_c_resc:
    v_mov_b32 v{V_T}, v{V_MR}
    s_nop 1
    v_permlane16_swap_b32 v{V_MR}, v{V_T}
    v_max_f32 v{V_MR}, v{V_MR}, v{V_T}
    v_mov_b32 v{V_T}, v{V_MR}
    s_nop 1
    v_permlane32_swap_b32 v{V_MR}, v{V_T}
    v_max_f32 v{V_MR}, v{V_MR}, v{V_T}
    v_mul_f32 v{V_T}, s{S_C}, v{V_MR}
    v_sub_f32 v{V_ALPHA}, v{V_M}, v{V_T}
    v_exp_f32 v{V_ALPHA}, v{V_ALPHA}
    v_mov_b32 v{V_M}, v{V_T}
    s_nop 0
    v_mul_f32 v{V_L}, v{V_L}, v{V_ALPHA}
    """)
    for r in range(8):
        a(f"v_mul_f32_dpp v{V_O+r}, v{V_ALPHA}, v{V_O+r} {qp(r)}")
    a(f"""
    s_cmp_eq_u32 s{S_PH}, 3
    s_cbranch_scc1 L_c_vs
    L_c_vloop:
    s_lshl_b32 s{S_TMP}, s{S_U}, 7
    v_add_u32 v{V_SA}, s{S_TMP}, v{V_SBB}
    ds_read_b128 {vr(V_S)}, v{V_SA} offset:{SB}
    """)
    slot_of(S_T)
    a(f"""
    v_add_u32 v{V_VA}, s{S_SLOT}, v{V_VE}
    v_add_u32 v{V_VA2}, s{S_SLOT}, v{V_VO}
    s_waitcnt lgkmcnt(0)
    L_c_vs:
    """)

    def vreads():
        for u in range(4):
            for hf in range(2):
                a(f"ds_read_b128 {vr(V_V+8*u+4*hf)}, v{(V_VA, V_VA2)[u & 1]} offset:{(u >> 1)*KPAD+hf*256}")

    def build(u):
        a(f"v_cvt_pk_bf16_f32 v{V_P+u}, v{V_S+u}, v{V_S+u}")
        for j in range(4):
            a(f"v_and_b32 v{V_A+4*u+j}, v{V_P+u}, v{V_MASK+j}")
    a(f"""
    s_mov_b32 s{S_NEED}, s{S_T}
    s_cmp_gt_i32 s{S_RDY}, s{S_NEED}
    s_cbranch_scc0 L_c_vlate
    """)
    vreads()
    a("L_c_vlate:")
    for r in range(4):
        a(f"v_fma_f32 v{V_S+r}, v{V_S+r}, s{S_C}, -v{V_M}")
    for r in range(4):
        a(f"v_exp_f32 v{V_S+r}, v{V_S+r}")
    a(f"""
    s_add_u32 s{S_U}, s{S_U}, 2
    s_add_u32 s{S_T}, s{S_T}, 2
    s_lshl_b32 s{S_TMP}, s{S_U}, 1
    s_cmp_lt_u32 s{S_U}, s{S_S}
    s_cselect_b32 s{S_T}, s{S_T}, s{S_TMP}
    s_cselect_b32 s{S_PH}, 2, 3
    v_mov_b32 v{V_CV}, s{S_T}
    """)
    build(0)
    a(f"""
    s_cmp_gt_i32 s{S_RDY}, s{S_NEED}
    s_cbranch_scc1 L_c_v
    """)
    build(1); build(2); build(3)
    a(f"""
    L_c_pv:
    ds_read_b128 {vr(V_T)}, v{V_RA} offset:{RDY}
    s_waitcnt lgkmcnt(0)
    """)
    refresh()
    a(f"""
    s_cmp_gt_i32 s{S_RDY}, s{S_NEED}
    s_cbranch_scc0 L_c_pv
    """)
    vreads()
    a("L_c_v:")
    k = 0
    for u in range(4):
        for hf in range(2):
            a(f"s_waitcnt lgkmcnt({7-k})")
            if k == 7:
                a(f"ds_write_b32 v{V_CO}, v{V_CV} offset:{CONS}")
            a(f"v_mfma_f32_16x16x32_bf16 {vr(V_O+4*hf)}, {vr(V_A+4*u)}, {vr(V_V+8*u+4*hf)}, {vr(V_O+4*hf)}")
            if hf == 0 and u < 3:
                build(u + 1)
            k += 1
    a(f"""
    v_add_f32 v{V_T}, v{V_S}, v{V_S+1}
    v_add_f32 v{V_T+1}, v{V_S+2}, v{V_S+3}
    v_add_f32 v{V_L}, v{V_L}, v{V_T}
    v_add_f32 v{V_L}, v{V_L}, v{V_T+1}
    s_cmp_eq_u32 s{S_PH}, 2
    s_cbranch_scc1 L_c_vloop
    s_branch L_c_kloop
    L_c_done:
    """)
    stamp(3)
    G = V_Q
    S_PEND = 4
    ML = V_A + 4
    a(f"""
    v_mov_b32 v{V_T+1}, v{V_L}
    v_lshlrev_b32 v{V_T}, 4, v1                 ; lane*16
    v_lshlrev_b32 v{V_T+2}, 3, v1               ; lane*8
    v_permlane16_swap_b32 v{V_L}, v{V_T+1}
    v_add_f32 v{V_L}, v{V_L}, v{V_T+1}
    v_mov_b32 v{V_T+1}, v{V_L}
    s_add_u32 s{S_TMP}, s{S_NKF}, 1
    s_and_b32 s{S_TMP}, s{S_TMP}, 1
    v_permlane32_swap_b32 v{V_L}, v{V_T+1}
    v_add_f32 v{V_L}, v{V_L}, v{V_T+1}
    s_cmp_eq_u32 s{S_TMP}, s{S_W}
    s_cbranch_scc1 L_fin
    ds_write_b128 v{V_T}, {vr(V_O)} offset:{MERGE}
    ds_write_b128 v{V_T}, {vr(V_O+4)} offset:{MERGE+1024}
    ds_write_b64 v{V_T+2}, v[{V_M}:{V_L}] offset:{MERGE+2048}
    s_waitcnt lgkmcnt(0)
    s_barrier
    s_branch L_end
    L_fin:
    s_barrier
    ds_read_b64 v[{V_A}:{V_A+1}], v{V_T+2} offset:{MERGE+2048}
    ds_read_b128 {vr(V_K)}, v{V_T} offset:{MERGE}
    ds_read_b128 {vr(V_K+4)}, v{V_T} offset:{MERGE+1024}
    v_lshrrev_b32 v{V_KA}, 2, v1
    v_lshlrev_b32 v{V_KA}, 12, v{V_KA}
    v_and_b32 v{V_T+2}, 3, v1
    v_lshl_add_u32 v{V_KA}, v{V_T+2}, 4, v{V_KA}
    s_waitcnt lgkmcnt(2)
    v_max_f32 v{V_T+1}, v{V_M}, v{V_A}
    v_sub_f32 v{V_ALPHA}, v{V_M}, v{V_T+1}
    v_sub_f32 v{V_A}, v{V_A}, v{V_T+1}
    v_exp_f32 v{V_ALPHA}, v{V_ALPHA}
    v_exp_f32 v{V_A}, v{V_A}
    v_min_u32 v{V_M}, -2, v{V_T+1}
    v_mul_f32 v{V_L}, v{V_L}, v{V_ALPHA}
    v_fmac_f32 v{V_L}, v{V_A}, v{V_A+1}
    v_min_u32 v{V_L}, -2, v{V_L}
    """)
    for r in range(8):
        a(f"v_mul_f32_dpp v{V_O+r}, v{V_ALPHA}, v{V_O+r} {qp(r)}")
    a(f"""
    v_mov_b32_dpp v{ML}, v{V_M} {qp(0)}
    v_mov_b32_dpp v{ML+1}, v{V_L} {qp(0)}
    v_mov_b32_dpp v{ML+2}, v{V_M} {qp(1)}
    v_mov_b32_dpp v{ML+3}, v{V_L} {qp(1)}
    buffer_store_dwordx4 {vr(ML)}, v{V_KA}, s[{S_WS}:{S_WS+3}], s{S_WSO} offen offset:64 sc1
    buffer_store_dwordx4 {vr(ML)}, v{V_KA}, s[{S_WS}:{S_WS+3}], s{S_WSO2} offen offset:64 sc1
    s_waitcnt lgkmcnt(0)
    """)
    for hf in range(2):
        for r in range(4 * hf, 4 * hf + 4):
            a(f"v_fmac_f32_dpp v{V_O+r}, v{V_A}, v{V_K+r} {qp(r)}")
        for r in range(4 * hf, 4 * hf + 4):
            a(f"v_min_u32 v{V_O+r}, -2, v{V_O+r}")
        a(f"buffer_store_dwordx4 {vr(V_O+4*hf)}, v{V_KA}, s[{S_WS}:{S_WS+3}], s{(S_WSO, S_WSO2)[hf]} offen sc1")
    stamp(4)
    a(f"""
    s_lshl_b32 s{S_OFF}, s2, 12
    s_mov_b32 s{S_NEED}, 0x40000
    """)
    for k in range(4):
        a(f"s_mov_b64 s[{S_PEND+2*k}:{S_PEND+2*k+1}], -1")

    def issue():
        for k in range(4):
            a(f"s_or_b64 exec, s[{S_PEND+2*k}:{S_PEND+2*k+1}], 1")
            a(f"buffer_load_dwordx4 {vr(G+4*k)}, v{V_T}, s[{S_WS}:{S_WS+3}], s{S_OFF} offen offset:{1024*k} sc1")
    issue()
    OA = V_VA
    a(f"""
    v_bfe_u32 v{OA}, v1, 4, 1
    v_lshlrev_b32 v{OA}, 9, v{OA}               ; q*512
    v_lshl_add_u32 v{OA}, v{V_T+2}, 4, v{OA}    ; + c*16
    s_and_b32 s{S_TMP}, s{S_J}, 3
    s_lshl_b32 s{S_TMP}, s{S_TMP}, 6
    s_bfe_u32 s{S_T2}, s{S_J}, 0x20002
    s_lshl_b32 s{S_T2}, s{S_T2}, 2
    s_add_u32 s{S_TMP}, s{S_TMP}, s{S_T2}
    s_lshr_b32 s{S_T2}, s{S_J}, 4
    s_lshl_b32 s{S_T2}, s{S_T2}, 8
    s_add_u32 s{S_TMP}, s{S_TMP}, s{S_T2}
    s_lshl_b32 s{S_T2}, s{S_H}, 10
    s_add_u32 s{S_TMP}, s{S_TMP}, s{S_T2}
    L_poll:
    s_mov_b64 exec, -1
    """)
    for k in range(4):
        b = G + 4 * k
        a(f"""
        s_waitcnt vmcnt({3 - k})
        v_max3_u32 v{V_S+k}, v{b}, v{b+1}, v{b+2}
        v_max_u32 v{V_S+k}, v{V_S+k}, v{b+3}
        v_cmp_eq_u32 s[{S_PEND+2*k}:{S_PEND+2*k+1}], -1, v{V_S+k}
        """)
    a(f"""
    s_or_b64 vcc, s[{S_PEND}:{S_PEND+1}], s[{S_PEND+2}:{S_PEND+3}]
    s_or_b64 s[12:13], s[{S_PEND+4}:{S_PEND+5}], s[{S_PEND+6}:{S_PEND+7}]
    s_or_b64 vcc, vcc, s[12:13]
    s_cbranch_scc0 L_got
    """)
    issue()
    a(f"""
    s_sub_u32 s{S_NEED}, s{S_NEED}, 1
    s_cbranch_scc0 L_poll
    s_waitcnt vmcnt(0)
    s_mov_b64 exec, -1
    L_got:
    """)
    stamp(5)
    X0, X1, T0, T1 = V_K, V_K + 1, V_K + 2, V_K + 3
    WT = V_K + 8
    AC = V_K + 16
    L0, L1 = V_K + 20, V_K + 21

    def dpp(op, d, s0, s1, ctl):
        a(f"{op}_dpp v{d}, v{s0}, v{s1} {ctl} row_mask:0xf bank_mask:0xf")
    a(f"""
    v_max3_f32 v{X0}, v{G}, v{G+4}, v{G+8}
    v_max3_f32 v{X1}, v{G+2}, v{G+6}, v{G+10}
    v_max_f32 v{X0}, v{X0}, v{G+12}
    v_max_f32 v{X1}, v{X1}, v{G+14}
    s_nop 0
    """)
    dpp("v_max_f32", X0, X0, X0, "row_ror:8")
    dpp("v_max_f32", X1, X1, X1, "row_ror:8")
    for sw in ("v_permlane16_swap_b32", "v_permlane32_swap_b32"):
        a(f"""
        v_mov_b32 v{T0}, v{X0}
        v_mov_b32 v{T1}, v{X1}
        s_nop 0
        {sw} v{X0}, v{T0}
        {sw} v{X1}, v{T1}
        v_max_f32 v{X0}, v{X0}, v{T0}
        v_max_f32 v{X1}, v{X1}, v{T1}
        """)
    for k in range(4):
        for q in range(2):
            a(f"v_sub_f32 v{WT+2*k+q}, v{G+4*k+2*q}, v{(X0, X1)[q]}")
    for k in range(4):
        for q in range(2):
            a(f"v_exp_f32 v{WT+2*k+q}, v{WT+2*k+q}")
    for k in range(4):
        op = "v_mul_f32" if k == 0 else "v_fmac_f32"
        for q in range(2):
            a(f"{op} v{(L0, L1)[q]}, v{WT+2*k+q}, v{G+4*k+2*q+1}")
        for r in range(4):
            dpp(op, AC + r, WT + 2 * k + (r & 1), G + 4 * k + r, "row_ror:12")
    a(f"""
    s_nop 0
    v_permlane16_swap_b32 v{L0}, v{L1}
    v_permlane16_swap_b32 v{AC}, v{AC+1}
    v_permlane16_swap_b32 v{AC+2}, v{AC+3}
    v_add_f32 v{L0}, v{L0}, v{L1}
    v_add_f32 v{AC}, v{AC}, v{AC+1}
    v_add_f32 v{AC+2}, v{AC+2}, v{AC+3}
    v_mov_b32 v{L1}, v{L0}
    v_mov_b32 v{AC+1}, v{AC}
    v_mov_b32 v{AC+3}, v{AC+2}
    v_permlane32_swap_b32 v{L0}, v{L1}
    v_permlane32_swap_b32 v{AC}, v{AC+1}
    v_permlane32_swap_b32 v{AC+2}, v{AC+3}
    v_add_f32 v{L0}, v{L0}, v{L1}
    v_add_f32 v{AC}, v{AC}, v{AC+1}
    v_add_f32 v{AC+2}, v{AC+2}, v{AC+3}
    """)
    dpp("v_add_f32", L0, L0, L0, "row_ror:8")
    dpp("v_add_f32", AC, AC, AC, "row_ror:8")
    dpp("v_add_f32", AC + 2, AC + 2, AC + 2, "row_ror:8")
    a(f"""
    v_rcp_f32 v{L1}, v{L0}
    s_nop 0
    v_fma_f32 v{X0}, -v{L0}, v{L1}, 1.0
    v_fma_f32 v{L1}, v{X0}, v{L1}, v{L1}
    s_nop 1
    """)
    dpp("v_mul_f32", AC, L1, AC, "row_ror:12")
    dpp("v_mul_f32", AC + 2, L1, AC + 2, "row_ror:12")
    a(f"""
    s_mov_b64 exec, 0x000f000f
    v_cvt_pk_bf16_f32 v{AC}, v{AC}, v{AC+2}
    buffer_store_dword v{AC}, v{OA}, s[{S_OUT}:{S_OUT+3}], s{S_TMP} offen
    """)
    stamp(7)
    if o.probe == 1:
        a("""
        s_memrealtime s[66:67]
        s_waitcnt lgkmcnt(0)
        s_sub_u32 s68, s66, s64
        L_probe:
        s_memrealtime s[70:71]
        s_waitcnt lgkmcnt(0)
        s_sub_u32 s69, s70, s66
        s_cmp_lt_u32 s69, s68
        s_cbranch_scc1 L_probe
        """)
    if o.probe >= 2:
        a(f"""
        s_memrealtime s[66:67]
        s_waitcnt lgkmcnt(0)
        s_sub_u32 s68, s72, s64
        s_mul_i32 s68, s68, {o.pmul}
        L_probe:
        s_memrealtime s[70:71]
        s_waitcnt lgkmcnt(0)
        s_sub_u32 s69, s70, s66
        s_cmp_lt_u32 s69, s68
        s_cbranch_scc1 L_probe
        """)
    a("L_end:")
    if o.stamps:
        a(f"""
        s_waitcnt lgkmcnt(0) vmcnt(0)
        s_mov_b64 exec, -1
        v_lshrrev_b32 v4, 6, v0
        s_nop 0
        v_readfirstlane_b32 s{S_W}, v4
        """)
        srd(S_WS, 18, WS_BYTES)
        a(f"""
        s_getreg_b32 s{ST0+16}, hwreg(HW_REG_XCC_ID)
        s_getreg_b32 s{ST0+17}, hwreg(HW_REG_HW_ID)
        s_mul_i32 s{S_TMP}, s2, 4
        s_add_u32 s{S_TMP}, s{S_TMP}, s{S_W}
        s_lshl_b32 s{S_TMP}, s{S_TMP}, 7
        s_add_u32 s{S_TMP}, s{S_TMP}, {STAMP_OFF}
        s_mov_b64 exec, 1
        v_mov_b32 v4, 0
        """)
        for i in range(18):
            a(f"v_mov_b32 v5, s{ST0+i}")
            a(f"buffer_store_dword v5, v4, s[{S_WS}:{S_WS+3}], s{S_TMP} offen offset:{4*i}")
            a("s_nop 1")
    a("L_exit:")
    a("s_endpgm")

    out = HEADER + f"; @launch grid=(256,1,1) block=(256,1,1) lds={LDS_BYTES}\n"
    out += f""".amdgcn_target "amdgcn-amd-amdhsa--gfx950"
.text
.globl {NAME}_kernel
.p2align 8
.type {NAME}_kernel,@function
"""
    out += a.text()
    acc = (NV + 3) // 4 * 4
    out += f""".section .rodata,"a"
.p2align 6
.amdhsa_kernel {NAME}_kernel
  .amdhsa_next_free_vgpr {NV}
  .amdhsa_next_free_sgpr 100
  .amdhsa_accum_offset {acc}
  .amdhsa_group_segment_fixed_size 0
  .amdhsa_kernarg_size 64
  .amdhsa_user_sgpr_count 2
  .amdhsa_user_sgpr_kernarg_segment_ptr 1
  .amdhsa_system_sgpr_workgroup_id_x 1
.end_amdhsa_kernel
"""
    return out


if __name__ == "__main__":
    p = argparse.ArgumentParser()
    p.add_argument("-o", default="cdna_kernels/" + NAME + ".s")
    p.add_argument("--w", type=int, default=22)
    p.add_argument("--dyn", type=int, default=5)
    p.add_argument("--la", type=int, default=8)
    p.add_argument("--pf", type=int, default=3)
    p.add_argument("--lp", type=int, default=1)
    p.add_argument("--xf", type=int, default=32)
    p.add_argument("--pol", default="nt")
    p.add_argument("--stamps", action="store_true")
    p.add_argument("--probe", type=int, default=0)
    p.add_argument("--pmul", type=int, default=1)
    o = p.parse_args()
    open(o.o, "w").write(gen(o))
```
